```python
import torch

def _softmax(x, axis=-1):
    return torch.softmax(x, dim=axis)
def _gelu(x):
    return torch.nn.functional.gelu(x, approximate="tanh")
def _silu(x):
    return torch.nn.functional.silu(x)
def _sigmoid(x):
    return torch.sigmoid(x)
def _layernorm(x, axis=-1, eps=1e-5):
    m = x.mean(dim=axis, keepdim=True)
    v = x.var(dim=axis, keepdim=True, unbiased=False)
    return (x - m) / torch.sqrt(v + eps)
def _scatter_add(tgt, idx, src, axis=0):
    return tgt.clone().index_add_(axis, idx, src)
def _segment_sum(src, seg, n):
    out = torch.zeros((n,) + src.shape[1:], dtype=src.dtype)
    return out.index_add_(0, seg, src)
def _pad(x, pw):
    flat = tuple(v for pair in reversed(pw) for v in pair)
    return torch.nn.functional.pad(x, flat)

kernel_name = 'standalone__low_rank_proj_linformer__prompt'

def setup_inputs():

    _w = (lambda a: (lambda t: t.to(torch.bfloat16) if t.is_floating_point() else t)(torch.as_tensor(a)))
    B, H, Sq, Skv, Dh, R = 1, 32, 2048, 2048, 192, 64
    return {
        "q": _w((lambda *s: torch.randn(*s, dtype=torch.bfloat16) * 0.8)(B, H, Sq, Dh)),
        "k": _w((lambda *s: torch.randn(*s, dtype=torch.bfloat16) * 0.8)(B, H, Skv, Dh)),
        "v": _w((lambda *s: torch.randn(*s, dtype=torch.bfloat16) * 0.05)(B, H, Skv, Dh)),
        "e_proj": _w((lambda *s: torch.randn(*s, dtype=torch.bfloat16) * 0.8)(R, Skv) * (Skv ** -0.5)),
        "f_proj": _w((lambda *s: torch.randn(*s, dtype=torch.bfloat16) * 0.05)(R, Skv) * (Skv ** -0.5)),
    }

def reference(q, k, v, e_proj, f_proj):
    B, H, Sq, Dh = q.shape
    kp = torch.einsum("rn,bhnd->bhrd", e_proj, k)
    vp = torch.einsum("rn,bhnd->bhrd", f_proj, v)
    scores = torch.einsum("bhqd,bhrd->bhqr", q, kp) * (Dh ** -0.5)
    p = _softmax(scores, axis=-1)
    o = torch.einsum("bhqr,bhrd->bhqd", p, vp)
    return o
```

```python
import sys, math, argparse

NAME = "standalone__low_rank_proj_linformer__prompt"

HEADER = """; Kernarg layout for this problem (64 bytes, ptrs only, base s[0:1]):
;   offset  48: d_debug   256 bytes
;   offset  56: d_ws      268435456 bytes workspace
; @launch grid=(256,1,1) block=(512,1,1) lds=163840
.amdgcn_target "amdgcn-amd-amdhsa--gfx950"
.text
.globl {n}_kernel
.p2align 8
.type {n}_kernel,@function
{n}_kernel:
"""

FOOTER = """
.section .rodata,"a"
.p2align 6
.amdhsa_kernel {n}_kernel
  .amdhsa_next_free_vgpr {vgpr}
  .amdhsa_next_free_sgpr 102
  .amdhsa_accum_offset {acc}
  .amdhsa_group_segment_fixed_size 0
  .amdhsa_kernarg_size 64
  .amdhsa_user_sgpr_count 2
  .amdhsa_user_sgpr_kernarg_segment_ptr 1
  .amdhsa_system_sgpr_workgroup_id_x 1
.end_amdhsa_kernel
"""


class G:
    def __init__(self):
        self.lines = []
        self.maxv = 0

    def e(self, s):
        self.lines.append("    " + s)

    def c(self, s):
        self.lines.append("    ; " + s)

    def label(self, s):
        self.lines.append(s + ":")


def vr(a, n=1):
    return f"v{a}" if n == 1 else f"v[{a}:{a+n-1}]"


def sr(a, n=1):
    return f"s{a}" if n == 1 else f"s[{a}:{a+n-1}]"


def gen(opt):
    g = G()
    e, c = g.e, g.c
    TS = opt.ts

    S_KV, S_E, S_Q, S_O, S_P, S_D = 20, 24, 28, 32, 36, 40
    sW, sH, sSub, sT, sQt = 44, 45, 46, 47, 48
    sT0, sT1, sT2, sT3 = 49, 50, 51, 52
    sRH, sCG = 53, 54
    sLO, sHI = 55, 56
    sC = 57
    sI = 58
    sM0K, sM0E = 62, 63
    sCnt = 64
    sTS = 70

    vLane = 1
    vK = 2
    vE = 5
    vQd = 6
    vEa = 8
    vKa = 14
    vPo = 23
    vG = 24
    vT = 25
    vQa = 32
    vOw = 44
    vOr = 48
    vOg = 49
    vFr = 50
    vGw = 51
    vAcc = 52
    vEf = 76
    vKf = 92
    vPk = 116

    def stamp(i):
        if TS:
            e(f"s_memrealtime {sr(sTS+2*i,2)}")

    e("s_cmp_ge_u32 s2, 256")
    e("s_cbranch_scc1 L_END")
    stamp(0)
    e("s_load_dwordx16 s[4:19], s[0:1], 0")
    e(f"v_and_b32 {vr(vLane)}, 63, v0")
    e(f"v_lshrrev_b32 {vr(vT)}, 6, v0")
    e(f"s_and_b32 {sr(sH)}, s2, 31")
    e(f"v_readfirstlane_b32 {sr(sW)}, {vr(vT)}")
    e(f"s_lshr_b32 {sr(sSub)}, s2, 5")
    e(f"s_lshr_b32 {sr(sT)}, {sr(sSub)}, 2")
    e(f"s_and_b32 {sr(sQt)}, {sr(sSub)}, 3")
    e(f"s_and_b32 {sr(sRH)}, {sr(sW)}, 1")
    e(f"s_lshr_b32 {sr(sCG)}, {sr(sW)}, 1")
    e(f"v_lshrrev_b32 {vr(vT)}, 3, {vr(vLane)}")
    e(f"v_lshlrev_b32 {vr(vT+1)}, 4, {vr(vLane)}")
    e(f"s_mul_i32 {sr(sM0K)}, {sr(sW)}, 3072")
    e(f"s_lshl_b32 {sr(sT0)}, {sr(sRH)}, 6")
    e(f"v_xor_b32 {vr(vT+1)}, {sr(sT0)}, {vr(vT+1)}")
    for i in range(3):
        e(f"v_add_u32 {vr(vT+2)}, {8*i}, {vr(vT)}")
        e(f"v_mul_u32_u24 {vr(vT+2)}, 11, {vr(vT+2)}")
        e(f"v_bfe_u32 {vr(vT+2)}, {vr(vT+2)}, 6, 1")
        e(f"v_lshlrev_b32 {vr(vT+2)}, 5, {vr(vT+2)}")
        e(f"v_xad_u32 {vr(vK+i)}, {vr(vT+1)}, {vr(vT+2)}, {sr(sM0K)}")
    e(f"s_lshl_b32 {sr(sT0)}, {sr(sW)}, 3")
    e(f"v_add_u32 {vr(vT+2)}, {sr(sT0)}, {vr(vT)}")
    e(f"v_bfe_u32 {vr(vT+3)}, {vr(vT+2)}, 1, 3")
    e(f"v_and_b32 {vr(vT+4)}, 7, {vr(vLane)}")
    e(f"v_xor_b32 {vr(vT+3)}, {vr(vT+3)}, {vr(vT+4)}")
    e(f"v_lshlrev_b32 {vr(vT+3)}, 4, {vr(vT+3)}")
    e(f"v_lshl_add_u32 {vr(vE)}, {vr(vT+2)}, 12, {vr(vT+3)}")
    e(f"s_lshl_b32 {sr(sM0E)}, {sr(sW)}, 10")
    e(f"s_add_u32 {sr(sM0E)}, {sr(sM0E)}, 24576")
    e(f"s_mul_i32 {sr(sT0)}, {sr(sH)}, 786432")
    e(f"s_mul_i32 {sr(sT1)}, {sr(sQt)}, 196608")
    e(f"s_add_u32 {sr(sT1)}, {sr(sT1)}, {sr(sT0)}")
    e(f"s_lshl_b32 {sr(sT2)}, {sr(sQt)}, 10")
    e(f"s_cmp_eq_u32 {sr(sT)}, 0")
    e("s_waitcnt lgkmcnt(0)")
    e(f"s_cselect_b32 {sr(S_KV)}, s6, s8")
    e(f"s_cselect_b32 {sr(S_KV+1)}, s7, s9")
    e(f"s_cselect_b32 {sr(S_E)}, s10, s12")
    e(f"s_cselect_b32 {sr(S_E+1)}, s11, s13")
    e(f"s_add_u32 {sr(S_KV)}, {sr(S_KV)}, {sr(sT1)}")
    e(f"s_addc_u32 {sr(S_KV+1)}, {sr(S_KV+1)}, 0")
    e(f"s_mov_b32 {sr(S_KV+2)}, 196608")
    e(f"s_mov_b32 {sr(S_KV+3)}, 0x00020000")
    e(f"s_add_u32 {sr(S_E)}, {sr(S_E)}, {sr(sT2)}")
    e(f"s_addc_u32 {sr(S_E+1)}, {sr(S_E+1)}, 0")
    e(f"s_sub_u32 {sr(S_E+2)}, 262144, {sr(sT2)}")
    e(f"s_mov_b32 {sr(S_E+3)}, 0x00020000")

    def phys(t):
        return ((t % 5) + 2) % 5

    def issue_kv(t):
        pb = 32768 * phys(t)
        e(f"s_add_u32 m0, {sr(sM0K)}, {pb}")
        e(f"s_mov_b32 {sr(sT3)}, {24576*t}")
        for i in range(3):
            e(f"buffer_load_dwordx4 {vr(vK+i)}, {sr(S_KV,4)}, {sr(sT3)} offen offset:{1024*i} nt lds")
        e(f"s_add_u32 m0, {sr(sM0E)}, {pb}")
        e(f"s_mov_b32 {sr(sT3)}, {128*t}")
        e(f"buffer_load_dwordx4 {vr(vE)}, {sr(S_E,4)}, {sr(sT3)} offen lds")

    def issue_q(j):
        e(f"s_lshl_b32 {sr(sT3)}, {sr(sW)}, 12")
        e(f"s_add_u32 {sr(sT3)}, {sr(sT3)}, {32768*j}")
        e(f"s_mov_b32 m0, {sr(sT3)}")
        e("s_nop 0")
        for i in range(4):
            e(f"buffer_load_dwordx4 {vr(vQd+(i&1))}, {sr(S_Q,4)}, {sr(sT3)} offen offset:{1024*i} nt lds")

    for t in range(5):
        issue_kv(t)

    c("remaining SRDs")
    e(f"s_mul_i32 {sr(sT1)}, {sr(sSub)}, 98304")
    e(f"s_add_u32 {sr(sT1)}, {sr(sT1)}, {sr(sT0)}")
    e(f"s_add_u32 {sr(S_Q)}, s4, {sr(sT1)}")
    e(f"s_addc_u32 {sr(S_Q+1)}, s5, 0")
    e(f"s_mov_b32 {sr(S_Q+2)}, 98304")
    e(f"s_mov_b32 {sr(S_Q+3)}, 0x00020000")
    e(f"s_add_u32 {sr(S_O)}, s14, {sr(sT1)}")
    e(f"s_addc_u32 {sr(S_O+1)}, s15, 0")
    e(f"s_mov_b32 {sr(S_O+2)}, 98304")
    e(f"s_mov_b32 {sr(S_O+3)}, 0x00020000")
    e(f"s_mul_i32 {sr(sT1)}, {sr(sH)}, 196608")
    e(f"s_add_u32 {sr(S_P)}, s18, {sr(sT1)}")
    e(f"s_addc_u32 {sr(S_P+1)}, s19, 0")
    e(f"s_mov_b32 {sr(S_P+2)}, 196608")
    e(f"s_mov_b32 {sr(S_P+3)}, 0x00020000")
    e(f"s_mov_b32 {sr(S_D)}, s16")
    e(f"s_mov_b32 {sr(S_D+1)}, s17")
    e(f"s_mov_b32 {sr(S_D+2)}, 256")
    e(f"s_mov_b32 {sr(S_D+3)}, 0x00020000")
    e(f"s_mov_b32 {sr(sLO)}, 0x00003f80")
    e(f"s_mov_b32 {sr(sHI)}, 0x3f800000")
    cst = math.log2(math.e) / math.sqrt(192.0)
    import struct
    e(f"s_mov_b32 {sr(sC)}, 0x{struct.unpack('<I', struct.pack('<f', cst))[0]:08x}")
    for i in range(4):
        e(f"s_mov_b32 {sr(sI+i)}, {3072*i}")

    c("Q DMA patterns: (lane>>3)*128 + (((lane&7) ^ (4par + lane>>4))*16)")
    e(f"v_lshrrev_b32 {vr(vT+2)}, 4, {vr(vLane)}")
    e(f"v_xor_b32 {vr(vT+3)}, {vr(vT+2)}, {vr(vT+4)}")
    e(f"v_lshlrev_b32 {vr(vT+3)}, 4, {vr(vT+3)}")
    e(f"v_lshl_add_u32 {vr(vQd)}, {vr(vT)}, 7, {vr(vT+3)}")
    e(f"v_xor_b32 {vr(vQd+1)}, 64, {vr(vQd)}")

    c("E frag addrs: (32rh + l&15)*128 + (((4ks+g) ^ ((l&15)>>1))*16)")
    e(f"v_and_b32 {vr(vT+3)}, 15, {vr(vLane)}")
    e(f"v_lshrrev_b32 {vr(vT+5)}, 1, {vr(vT+3)}")
    e(f"v_xor_b32 {vr(vT+5)}, {vr(vT+5)}, {vr(vT+2)}")
    e(f"v_lshlrev_b32 {vr(vT+5)}, 4, {vr(vT+5)}")
    e(f"v_lshl_add_u32 {vr(vT+5)}, {vr(vT+3)}, 7, {vr(vT+5)}")
    e(f"s_lshl_b32 {sr(sT1)}, {sr(sRH)}, 12")
    e(f"v_add_u32 {vr(vEa)}, {sr(sT1)}, {vr(vT+5)}")
    e(f"v_xor_b32 {vr(vEa+1)}, 64, {vr(vEa)}")
    for s_ in (1, 2):
        e(f"v_add_u32 {vr(vEa+2*s_)}, {65536*s_}, {vr(vEa)}")
        e(f"v_add_u32 {vr(vEa+2*s_+1)}, {65536*s_}, {vr(vEa+1)}")

    c("K frag addrs: (8g + r4)*384 + ((u*32) ^ (f<<5)) + 8*c4 ; u = 3cg+ct ; f = bit1(r4) | (g&1)<<1")
    e(f"v_bfe_u32 {vr(vT+5)}, {vr(vLane)}, 2, 2")
    e(f"v_lshl_add_u32 {vr(vT+5)}, {vr(vT+2)}, 3, {vr(vT+5)}")
    e(f"v_mul_u32_u24 {vr(vT+5)}, 384, {vr(vT+5)}")
    e(f"v_and_b32 {vr(vT+6)}, 3, {vr(vLane)}")
    e(f"v_lshl_add_u32 {vr(vT+5)}, {vr(vT+6)}, 3, {vr(vT+5)}")
    e(f"v_bfe_u32 {vr(vT+6)}, {vr(vLane)}, 3, 2")
    e(f"v_lshlrev_b32 {vr(vT+6)}, 5, {vr(vT+6)}")
    e(f"s_mul_i32 {sr(sT1)}, {sr(sCG)}, 96")
    for ct in range(3):
        e(f"s_add_u32 {sr(sT2)}, {sr(sT1)}, {32*ct}")
        e(f"v_xad_u32 {vr(vKa+ct)}, {vr(vT+6)}, {sr(sT2)}, {vr(vT+5)}")
    for s_ in (1, 2):
        for ct in range(3):
            e(f"v_add_u32 {vr(vKa+3*s_+ct)}, {65536*s_}, {vr(vKa+ct)}")

    c("partial store voffset")
    e(f"s_mul_i32 {sr(sT1)}, {sr(sRH)}, 12288")
    e(f"v_lshlrev_b32 {vr(vT+5)}, 4, {vr(vLane)}")
    e(f"v_add_u32 {vr(vPo)}, {sr(sT1)}, {vr(vT+5)}")
    e(f"s_cmp_eq_u32 {sr(sT)}, 0")
    e("s_cbranch_scc1 L_PO_DONE")
    e(f"v_and_b32 {vr(vT+5)}, 3, {vr(vLane)}")
    e(f"v_bfe_u32 {vr(vT+6)}, {vr(vLane)}, 2, 1")
    e(f"v_lshl_or_b32 {vr(vT+5)}, {vr(vT+6)}, 3, {vr(vT+5)}")
    e(f"v_bfe_u32 {vr(vT+6)}, {vr(vLane)}, 3, 1")
    e(f"v_lshl_or_b32 {vr(vT+5)}, {vr(vT+6)}, 2, {vr(vT+5)}")
    e(f"v_bfe_u32 {vr(vT+6)}, {vr(vLane)}, 4, 1")
    e(f"v_lshl_or_b32 {vr(vT+5)}, {vr(vT+6)}, 5, {vr(vT+5)}")
    e(f"v_lshlrev_b32 {vr(vT+5)}, 4, {vr(vT+5)}")
    e(f"v_lshrrev_b32 {vr(vT+6)}, 5, {vr(vLane)}")
    e(f"v_lshl_add_u32 {vr(vT+5)}, {vr(vT+6)}, 10, {vr(vT+5)}")
    e(f"s_lshl_b32 {sr(sT1)}, {sr(sRH)}, 11")
    e(f"v_add_u32 {vr(vPo)}, {sr(sT1)}, {vr(vT+5)}")
    g.label("L_PO_DONE")

    IMG = 98304
    c("gather / frag addresses")
    e(f"v_lshlrev_b32 {vr(vG)}, 4, v0")
    e(f"v_add_u32 {vr(vGw)}, {IMG}, {vr(vG)}")
    e(f"v_lshlrev_b32 {vr(vFr)}, 4, {vr(vLane)}")
    e(f"v_add_u32 {vr(vFr)}, {IMG}, {vr(vFr)}")

    c("Q frag addrs: 12288w + Lam*128 + (((2*s4+hh) ^ ((Lam>>1)&7))*16), Lam = 3q+L")
    e(f"s_mul_i32 {sr(sT1)}, {sr(sW)}, 12288")
    e(f"v_and_b32 {vr(vT+3)}, 31, {vr(vLane)}")
    e(f"v_lshrrev_b32 {vr(vT+2)}, 5, {vr(vLane)}")
    e(f"v_mul_u32_u24 {vr(vT+5)}, 3, {vr(vT+3)}")
    for L in range(3):
        e(f"v_add_u32 {vr(vT+6)}, {L}, {vr(vT+5)}")
        e(f"v_bfe_u32 {vr(vT+4)}, {vr(vT+6)}, 1, 3")
        e(f"v_xor_b32 {vr(vT+4)}, {vr(vT+4)}, {vr(vT+2)}")
        e(f"v_lshlrev_b32 {vr(vT+4)}, 4, {vr(vT+4)}")
        e(f"v_lshl_add_u32 {vr(vT+6)}, {vr(vT+6)}, 7, {sr(sT1)}")
        for s4 in range(4):
            if s4 == 0:
                e(f"v_add_u32 {vr(vQa+4*L)}, {vr(vT+4)}, {vr(vT+6)}")
            elif s4 < 3:
                e(f"v_xad_u32 {vr(vQa+4*L+s4)}, {vr(vT+4)}, {32*s4}, {vr(vT+6)}")
            else:
                e(f"v_xor_b32 {vr(vT+1)}, 96, {vr(vT+4)}")
                e(f"v_add_u32 {vr(vQa+4*L+s4)}, {vr(vT+1)}, {vr(vT+6)}")
    c("O staging write addrs: 12288w + q*384 + (((2*c2+hh) ^ (q&7))*16)")
    e(f"v_and_b32 {vr(vT+4)}, 7, {vr(vT+3)}")
    e(f"v_xor_b32 {vr(vT+4)}, {vr(vT+4)}, {vr(vT+2)}")
    e(f"v_lshlrev_b32 {vr(vT+4)}, 4, {vr(vT+4)}")
    e(f"v_lshl_add_u32 {vr(vT+6)}, {vr(vT+5)}, 7, {sr(sT1)}")
    for c2 in range(4):
        if c2 == 0:
            e(f"v_add_u32 {vr(vOw)}, {vr(vT+4)}, {vr(vT+6)}")
        elif c2 < 3:
            e(f"v_xad_u32 {vr(vOw+c2)}, {vr(vT+4)}, {32*c2}, {vr(vT+6)}")
        else:
            e(f"v_xor_b32 {vr(vT+1)}, 96, {vr(vT+4)}")
            e(f"v_add_u32 {vr(vOw+c2)}, {vr(vT+1)}, {vr(vT+6)}")
    c("O staging read addr: 12288w + (l>>3)*384 + (((l&7)^(l>>3))*16) ; global: 12288w + (l>>3)*384 + (l&7)*16")
    e(f"v_lshrrev_b32 {vr(vT)}, 3, {vr(vLane)}")
    e(f"v_and_b32 {vr(vT+4)}, 7, {vr(vLane)}")
    e(f"v_mul_u32_u24 {vr(vT+5)}, 384, {vr(vT)}")
    e(f"v_add_u32 {vr(vT+5)}, {sr(sT1)}, {vr(vT+5)}")
    e(f"v_lshl_add_u32 {vr(vOg)}, {vr(vT+4)}, 4, {vr(vT+5)}")
    e(f"v_xor_b32 {vr(vT+4)}, {vr(vT+4)}, {vr(vT)}")
    e(f"v_lshl_add_u32 {vr(vOr)}, {vr(vT+4)}, 4, {vr(vT+5)}")

    QPRE = opt.qpre

    def acc(rt, ct):
        return vAcc + (rt * 3 + ct) * 4

    def ef(ks, rt):
        return vEf + (ks * 2 + rt) * 4

    def kf(ct, ks):
        return vKf + (ct * 2 + ks) * 4

    def phase1(isV):
        issued = 5
        for t in range(8):
            c(f"---- tile {t}")
            allowed = (issued - (t + 1)) * 4
            e(f"s_waitcnt vmcnt({allowed})")
            e("s_barrier")
            if t == 0:
                stamp(1)
            if 1 <= t <= 3:
                issue_kv(t + 4)
                issued += 1
            elif t >= 4 and (t - 4) < QPRE and t <= 6:
                issue_q(t - 4)
                issued += 1
            p = phys(t)
            st, lo = p // 2, (p % 2) * 32768
            nrd = 0
            for ks in range(2):
                for rt in range(2):
                    e(f"ds_read_b128 {vr(ef(ks,rt),4)}, {vr(vEa+2*st+ks)} offset:{lo+24576+2048*rt}")
                for ct in range(3):
                    for hf in range(2):
                        e(f"ds_read_b64_tr_b16 {vr(kf(ct,ks)+2*hf,2)}, {vr(vKa+3*st+ct)} offset:{lo+12288*ks+1536*hf}")
            for ks in range(2):
                for ct in range(3):
                    done = ks * 8 + 2 + 2 * (ct + 1)
                    e(f"s_waitcnt lgkmcnt({16-done})")
                    for rt in range(2):
                        a = acc(rt, ct)
                        cin = "0" if (t == 0 and ks == 0) else vr(a, 4)
                        if isV:
                            e(f"v_mfma_f32_16x16x32_bf16 {vr(a,4)}, {vr(ef(ks,rt),4)}, {vr(kf(ct,ks),4)}, {cin}")
                        else:
                            e(f"v_mfma_f32_16x16x32_bf16 {vr(a,4)}, {vr(kf(ct,ks),4)}, {vr(ef(ks,rt),4)}, {cin}")
        stamp(2)
        c("---- epilogue: pack, swap, store partial")
        e(f"s_mul_i32 {sr(sT0)}, {sr(sSub)}, 24576")
        e(f"s_mul_i32 {sr(sT1)}, {sr(sCG)}, 3")
        e("s_nop 3")
        for ct in range(3):
            pk = vPk + 4 * ct
            if ct == 2:
                e("s_nop 1")
            e(f"v_cvt_pk_bf16_f32 {vr(pk)}, {vr(acc(0,ct))}, {vr(acc(0,ct)+1)}")
            e(f"v_cvt_pk_bf16_f32 {vr(pk+1)}, {vr(acc(0,ct)+2)}, {vr(acc(0,ct)+3)}")
            e(f"v_cvt_pk_bf16_f32 {vr(pk+2)}, {vr(acc(1,ct))}, {vr(acc(1,ct)+1)}")
            e(f"v_cvt_pk_bf16_f32 {vr(pk+3)}, {vr(acc(1,ct)+2)}, {vr(acc(1,ct)+3)}")
            e(f"s_add_u32 {sr(sT2)}, {sr(sT1)}, {ct}")
            if isV:
                e(f"s_lshr_b32 {sr(sT3)}, {sr(sT2)}, 1")
                e(f"s_lshl_b32 {sr(sT3)}, {sr(sT3)}, 12")
                e(f"s_and_b32 {sr(sT2)}, {sr(sT2)}, 1")
                e(f"s_lshl_b32 {sr(sT2)}, {sr(sT2)}, 8")
                e(f"s_add_u32 {sr(sT2)}, {sr(sT2)}, {sr(sT3)}")
            else:
                e(f"s_lshl_b32 {sr(sT2)}, {sr(sT2)}, 10")
            e(f"s_add_u32 {sr(sT2)}, {sr(sT2)}, {sr(sT0)}")
            op = "v_permlane32_swap_b32" if isV else "v_permlane16_swap_b32"
            e(f"{op} {vr(pk)}, {vr(pk+2)}")
            e(f"{op} {vr(pk+1)}, {vr(pk+3)}")
            e("s_nop 0")
            e(f"buffer_store_dwordx4 {vr(pk,4)}, {vr(vPo)}, {sr(S_P,4)}, {sr(sT2)} offen sc1")

    e(f"s_cmp_eq_u32 {sr(sT)}, 0")
    e("s_cbranch_scc0 L_P1_V")
    phase1(False)
    e("s_branch L_P1_DONE")
    g.label("L_P1_V")
    phase1(True)
    g.label("L_P1_DONE")

    nq_after = 3 - QPRE
    if opt.qafter == "before_flag":
        for j in range(QPRE, 3):
            issue_q(j)
        e(f"s_waitcnt vmcnt({4*nq_after})")
    else:
        e("s_waitcnt vmcnt(0)")
    e("s_barrier")
    stamp(3)

    e(f"s_cmp_lg_u32 {sr(sW)}, 0")
    e("s_cbranch_scc1 L_POLL_SKIP")
    e("s_mov_b64 exec, 1")
    if opt.flag == "byte":
        e(f"s_lshl_b32 {sr(sT0)}, {sr(sH)}, 3")
        e(f"s_add_u32 {sr(sT1)}, {sr(sT0)}, {sr(sSub)}")
        e(f"v_mov_b32 {vr(vT)}, {sr(sT1)}")
        e(f"v_mov_b32 {vr(vT+1)}, 1")
        e(f"v_mov_b32 {vr(vT+2)}, {sr(sT0)}")
        e(f"buffer_store_byte {vr(vT+1)}, {vr(vT)}, {sr(S_D,4)}, 0 offen sc1")
    else:
        e(f"s_lshl_b32 {sr(sT0)}, {sr(sH)}, 3")
        e(f"v_mov_b32 {vr(vT+1)}, 1")
        e(f"v_mov_b32 {vr(vT+2)}, {sr(sT0)}")
        e(f"buffer_atomic_add {vr(vT+1)}, {vr(vT+2)}, {sr(S_D,4)}, 0 offen sc1")
    e(f"s_mov_b32 {sr(sCnt)}, 0")
    g.label("L_POLL")
    e(f"buffer_load_dwordx2 {vr(vT+3,2)}, {vr(vT+2)}, {sr(S_D,4)}, 0 offen sc1")
    e(f"s_add_u32 {sr(sCnt)}, {sr(sCnt)}, 1")
    e("s_waitcnt vmcnt(0)")
    e(f"v_readfirstlane_b32 {sr(sT0)}, {vr(vT+3)}")
    e(f"v_readfirstlane_b32 {sr(sT1)}, {vr(vT+4)}")
    if opt.flag == "byte":
        e(f"s_and_b32 {sr(sT0)}, {sr(sT0)}, {sr(sT1)}")
        e(f"s_cmp_eq_u32 {sr(sT0)}, 0x01010101")
    else:
        e(f"s_cmp_eq_u32 {sr(sT0)}, 8")
    e("s_cbranch_scc1 L_POLL_DONE")
    e(f"s_cmp_gt_u32 {sr(sCnt)}, 200000")
    e("s_cbranch_scc1 L_POLL_DONE")
    e("s_sleep 2")
    e("s_branch L_POLL")
    g.label("L_POLL_DONE")
    e("s_mov_b64 exec, -1")
    g.label("L_POLL_SKIP")
    if opt.qafter == "after_flag":
        for j in range(QPRE, 3):
            issue_q(j)
    e("s_barrier")
    stamp(4)

    vGd = 128
    vS = 76
    def gd(k, j):
        return vGd + (k * 4 + j) * 4
    for k in range(6):
        tt, kk = k // 3, k % 3
        for j in range(4):
            e(f"s_mov_b32 {sr(sT0)}, {(tt*4+j)*24576 + kk*8192}")
            e(f"buffer_load_dwordx4 {vr(gd(k,j),4)}, {vr(vG)}, {sr(S_P,4)}, {sr(sT0)} offen sc1")

    def gsum(k, tmp):
        e(f"s_waitcnt vmcnt({24-4*(k+1)})")
        for j in range(4):
            for d in range(4):
                for hl in range(2):
                    a = tmp + 2 * d + hl
                    cin = "0" if j == 0 else vr(a)
                    e(f"v_dot2_f32_bf16 {vr(a)}, {vr(gd(k,j)+d)}, {sr(sHI if hl else sLO)}, {cin}")
        e("s_nop 2")
        for d in range(4):
            e(f"v_cvt_pk_bf16_f32 {vr(tmp+8+d)}, {vr(tmp+2*d)}, {vr(tmp+2*d+1)}")
        e(f"ds_write_b128 {vr(vGw)}, {vr(tmp+8,4)} offset:{8192*k}")

    for k in range(3):
        gsum(k, vS + 12 * k)
    e("s_waitcnt lgkmcnt(0)")
    e("s_barrier")
    stamp(5)

    vQf = 52
    vKP = 100
    vSa = 128
    vPf = 160
    NS = 6
    for s in range(12):
        e(f"ds_read_b128 {vr(vQf+4*s,4)}, {vr(vQa+s)}")
    seq = [(s, rt) for s in range(12) for rt in range(2)]
    def kp_read(n):
        s, rt = seq[n]
        e(f"ds_read_b128 {vr(vKP+4*(n%NS),4)}, {vr(vFr)} offset:{(rt*12+s)*1024}")
    for n in range(NS):
        kp_read(n)
    issued = NS
    for n in range(24):
        s, rt = seq[n]
        e(f"s_waitcnt lgkmcnt({min(15, issued-(n+1))})")
        a = vSa + 16 * rt
        cin = "0" if s == 0 else vr(a, 16)
        e(f"v_mfma_f32_32x32x16_bf16 {vr(a,16)}, {vr(vKP+4*(n%NS),4)}, {vr(vQf+4*s,4)}, {cin}")
        if issued < 24:
            kp_read(issued)
            issued += 1
    c("V gather sums")
    for k in range(3, 6):
        gsum(k, 224 + 0 if False else (52 + 12 * (k - 3)))
    c("softmax")
    vM, vM2, vSum, vSum2 = 88, 89, 90, 91
    e(f"v_max3_f32 {vr(vM)}, {vr(vSa)}, {vr(vSa+1)}, {vr(vSa+2)}")
    e(f"v_max3_f32 {vr(vM2)}, {vr(vSa+3)}, {vr(vSa+4)}, {vr(vSa+5)}")
    for i in range(6, 30, 4):
        e(f"v_max3_f32 {vr(vM)}, {vr(vM)}, {vr(vSa+i)}, {vr(vSa+i+1)}")
        e(f"v_max3_f32 {vr(vM2)}, {vr(vM2)}, {vr(vSa+i+2)}, {vr(vSa+i+3)}")
    e(f"v_max3_f32 {vr(vM)}, {vr(vM)}, {vr(vSa+30)}, {vr(vSa+31)}")
    e(f"v_max_f32 {vr(vM)}, {vr(vM)}, {vr(vM2)}")
    e(f"v_mov_b32 {vr(vM2)}, {vr(vM)}")
    e("s_nop 1")
    e(f"v_permlane32_swap_b32 {vr(vM)}, {vr(vM2)}")
    e("s_nop 1")
    e(f"v_max_f32 {vr(vM)}, {vr(vM)}, {vr(vM2)}")
    e(f"v_mul_f32 {vr(vM)}, {sr(sC)}, {vr(vM)}")
    for i in range(32):
        e(f"v_fma_f32 {vr(vSa+i)}, {vr(vSa+i)}, {sr(sC)}, -{vr(vM)}")
    for i in range(32):
        e(f"v_exp_f32 {vr(vSa+i)}, {vr(vSa+i)}")
    e("s_nop 0")
    e(f"v_add_f32 {vr(vSum)}, {vr(vSa)}, {vr(vSa+1)}")
    e(f"v_add_f32 {vr(vSum2)}, {vr(vSa+2)}, {vr(vSa+3)}")
    for i in range(4, 32, 2):
        e(f"v_add_f32 {vr(vSum)}, {vr(vSum)}, {vr(vSa+i)}")
        e(f"v_add_f32 {vr(vSum2)}, {vr(vSum2)}, {vr(vSa+i+1)}")
    e(f"v_add_f32 {vr(vSum)}, {vr(vSum)}, {vr(vSum2)}")
    e(f"v_mov_b32 {vr(vSum2)}, {vr(vSum)}")
    e("s_nop 1")
    e(f"v_permlane32_swap_b32 {vr(vSum)}, {vr(vSum2)}")
    e("s_nop 1")
    e(f"v_add_f32 {vr(vSum)}, {vr(vSum)}, {vr(vSum2)}")
    e(f"v_rcp_f32 {vr(vSum)}, {vr(vSum)}")
    e("s_nop 0")
    for i in range(32):
        e(f"v_mul_f32 {vr(vSa+i)}, {vr(vSa+i)}, {vr(vSum)}")
    for i in range(16):
        e(f"v_cvt_pk_bf16_f32 {vr(vPf+i)}, {vr(vSa+2*i)}, {vr(vSa+2*i+1)}")
    e("s_waitcnt lgkmcnt(0)")
    e("s_barrier")
    stamp(6)

    vVP = 100
    vOa = 128
    vOp = 52
    vOs = 208
    seq = [(jp, s, jj) for jp in range(3) for s in range(4) for jj in range(2)]
    VPB = 24576
    def vp_read(n):
        jp, s, jj = seq[n]
        e(f"ds_read_b128 {vr(vVP+4*(n%NS),4)}, {vr(vFr)} offset:{VPB+((2*jp+jj)*4+s)*1024}")
    stp = opt.stpol
    for n in range(NS):
        vp_read(n)
    issued = NS
    pend = []
    for n in range(NS):
        pend.append(('vp', n))

    def wait_for(tag):
        idx = pend.index(tag)
        after = len(pend) - idx - 1
        e(f"s_waitcnt lgkmcnt({min(15, after)})")
        del pend[:idx + 1]

    def epilogue(jp):
        ob = vOa if jp % 2 == 0 else 176
        for jj in range(2):
            a = ob + 16 * jj
            for a2 in range(2):
                pk = vOp + (jj * 2 + a2) * 4
                for d in range(4):
                    e(f"v_cvt_pk_bf16_f32 {vr(pk+d)}, {vr(a+8*a2+2*d)}, {vr(a+8*a2+2*d+1)}")
                e(f"ds_write_b128 {vr(vOw+2*jj+a2)}, {vr(pk,4)} offset:{128*jp}")
                pend.append(('w', jp, jj, a2))
        for i in range(4):
            e(f"ds_read_b128 {vr(vOs+16*jp+4*i,4)}, {vr(vOr)} offset:{128*jp+3072*i}")
            pend.append(('r', jp, i))

    def stores(jp):
        for i in range(4):
            if ('r', jp, i) in pend:
                wait_for(('r', jp, i))
            e(f"buffer_store_dwordx4 {vr(vOs+16*jp+4*i,4)}, {vr(vOg)}, {sr(S_O,4)}, {sr(sI+i)} offen offset:{128*jp} {stp}")

    for n in range(24):
        jp, s, jj = seq[n]
        if ('vp', n) in pend:
            wait_for(('vp', n))
        ob = vOa if jp % 2 == 0 else 176
        a = ob + 16 * jj
        cin = "0" if s == 0 else vr(a, 16)
        e(f"v_mfma_f32_32x32x16_bf16 {vr(a,16)}, {vr(vVP+4*(n%NS),4)}, {vr(vPf+4*s,4)}, {cin}")
        if issued < 24:
            vp_read(issued)
            pend.append(('vp', issued))
            issued += 1
        if n % 8 == 1 and jp >= 1:
            e("s_nop 7")
            e("s_nop 1")
            epilogue(jp - 1)
        if n % 8 == 5 and jp >= 1:
            stores(jp - 1)
    e("s_nop 7")
    e("s_nop 3")
    epilogue(2)
    stores(2)
    stamp(7)
    if TS:
        e("s_waitcnt vmcnt(0)")
        stamp(8)
        e("s_waitcnt lgkmcnt(0)")
        e(f"s_cmp_lg_u32 {sr(sW)}, 0")
        e("s_cbranch_scc1 L_END")
        e(f"s_add_u32 {sr(S_P)}, s18, 0x1000000")
        e(f"s_addc_u32 {sr(S_P+1)}, s19, 0")
        e(f"s_mov_b32 {sr(S_P+2)}, 0x10000")
        e("s_mov_b64 exec, 1")
        e("s_lshl_b32 s3, s2, 7")
        e(f"v_mov_b32 {vr(vT)}, s3")
        e(f"s_getreg_b32 {sr(sTS+18)}, hwreg(HW_REG_XCC_ID)")
        e(f"s_mov_b32 {sr(sTS+19)}, {sr(sCnt)}")
        for i in range(10):
            e(f"v_mov_b32 {vr(vT+1)}, {sr(sTS+2*i)}")
            e(f"v_mov_b32 {vr(vT+2)}, {sr(sTS+2*i+1)}")
            e(f"buffer_store_dwordx2 {vr(vT+1,2)}, {vr(vT)}, {sr(S_P,4)}, 0 offen offset:{8*i}")
            e("s_nop 1")
    g.label("L_END")
    e("s_endpgm")

    out = HEADER.format(n=NAME) + "\n".join(g.lines) + FOOTER.format(n=NAME, vgpr=256, acc=256)
    return out


if __name__ == "__main__":
    ap = argparse.ArgumentParser()
    ap.add_argument("-o", default=f"cdna_kernels/{NAME}.s")
    ap.add_argument("--ts", type=int, default=0)
    ap.add_argument("--qpre", type=int, default=1)
    ap.add_argument("--qafter", default="before_flag")
    ap.add_argument("--flag", default="byte")
    ap.add_argument("--stpol", default="sc1")
    opt = ap.parse_args()
    open(opt.o, "w").write(gen(opt))
```

```python
import sys, math, argparse

NAME = "standalone__low_rank_proj_linformer__prompt"

HEADER = """; Kernarg layout for this problem (64 bytes, ptrs only, base s[0:1]):
;   offset  56: d_ws      268435456 bytes workspace
; @launch grid=(256,1,1) block=(512,1,1) lds=163840
.amdgcn_target "amdgcn-amd-amdhsa--gfx950"
.text
.globl {n}_kernel
.p2align 8
.type {n}_kernel,@function
{n}_kernel:
"""

FOOTER = """
.section .rodata,"a"
.p2align 6
.amdhsa_kernel {n}_kernel
  .amdhsa_next_free_vgpr {vgpr}
  .amdhsa_next_free_sgpr 102
  .amdhsa_accum_offset {acc}
  .amdhsa_group_segment_fixed_size 0
  .amdhsa_kernarg_size 64
  .amdhsa_user_sgpr_count 2
  .amdhsa_user_sgpr_kernarg_segment_ptr 1
  .amdhsa_system_sgpr_workgroup_id_x 1
.end_amdhsa_kernel
"""


class G:
    def __init__(self):
        self.lines = []
        self.maxv = 0

    def e(self, s):
        self.lines.append("    " + s)

    def c(self, s):
        self.lines.append("    ; " + s)

    def label(self, s):
        self.lines.append(s + ":")


def vr(a, n=1):
    return f"v{a}" if n == 1 else f"v[{a}:{a+n-1}]"


def sr(a, n=1):
    return f"s{a}" if n == 1 else f"s[{a}:{a+n-1}]"


def gen(opt):
    g = G()
    e, c = g.e, g.c
    TS = opt.ts

    S_KV, S_E, S_Q, S_O, S_P, S_D = 20, 24, 28, 32, 36, 40
    sW, sH, sSub, sT, sQt = 44, 45, 46, 47, 48
    sT0, sT1, sT2, sT3 = 49, 50, 51, 52
    sRH, sCG = 53, 54
    sLO, sHI = 55, 56
    sC = 57
    sI = 58
    sM0K, sM0E = 62, 63
    sCnt = 64
    S_F = 96
    sTS = 66

    vLane = 1
    vK = 2
    vE = 5
    vQd = 6
    vEa = 8
    vKa = 14
    vPo = 23
    vG = 24
    vT = 25
    vQa = 32
    vOw = 44
    vOr = 48
    vOg = 49
    vFr = 50
    vGw = 51
    vFl = 124
    vAcc = 52
    vEf = 76
    vKf = 128
    vPk = 112

    def stamp(i):
        if TS:
            e(f"s_memrealtime {sr(sTS+2*i,2)}")

    e("s_cmp_ge_u32 s2, 256")
    e("s_cbranch_scc1 L_END")
    stamp(0)
    e("s_load_dwordx16 s[4:19], s[0:1], 0")
    e(f"v_and_b32 {vr(vLane)}, 63, v0")
    e(f"v_lshrrev_b32 {vr(vT)}, 6, v0")
    e(f"s_and_b32 {sr(sH)}, s2, 31")
    e(f"v_readfirstlane_b32 {sr(sW)}, {vr(vT)}")
    e(f"s_lshr_b32 {sr(sSub)}, s2, 5")
    e(f"s_lshr_b32 {sr(sT)}, {sr(sSub)}, 2")
    e(f"s_and_b32 {sr(sQt)}, {sr(sSub)}, 3")
    e(f"s_and_b32 {sr(sRH)}, {sr(sW)}, 1")
    e(f"s_lshr_b32 {sr(sCG)}, {sr(sW)}, 1")
    e(f"v_lshrrev_b32 {vr(vT)}, 3, {vr(vLane)}")
    e(f"v_lshlrev_b32 {vr(vT+1)}, 4, {vr(vLane)}")
    e(f"s_mul_i32 {sr(sM0K)}, {sr(sW)}, 3072")
    e(f"s_lshl_b32 {sr(sT0)}, {sr(sRH)}, 6")
    e(f"v_xor_b32 {vr(vT+1)}, {sr(sT0)}, {vr(vT+1)}")
    for i in range(3):
        e(f"v_add_u32 {vr(vT+2)}, {8*i}, {vr(vT)}")
        e(f"v_mul_u32_u24 {vr(vT+2)}, 11, {vr(vT+2)}")
        e(f"v_bfe_u32 {vr(vT+2)}, {vr(vT+2)}, 6, 1")
        e(f"v_lshlrev_b32 {vr(vT+2)}, 5, {vr(vT+2)}")
        e(f"v_xad_u32 {vr(vK+i)}, {vr(vT+1)}, {vr(vT+2)}, {sr(sM0K)}")
    e(f"s_lshl_b32 {sr(sT0)}, {sr(sW)}, 3")
    e(f"v_add_u32 {vr(vT+2)}, {sr(sT0)}, {vr(vT)}")
    e(f"v_bfe_u32 {vr(vT+3)}, {vr(vT+2)}, 1, 3")
    e(f"v_and_b32 {vr(vT+4)}, 7, {vr(vLane)}")
    e(f"v_xor_b32 {vr(vT+3)}, {vr(vT+3)}, {vr(vT+4)}")
    e(f"v_lshlrev_b32 {vr(vT+3)}, 4, {vr(vT+3)}")
    e(f"v_lshl_add_u32 {vr(vE)}, {vr(vT+2)}, 12, {vr(vT+3)}")
    e(f"s_lshl_b32 {sr(sM0E)}, {sr(sW)}, 10")
    e(f"s_add_u32 {sr(sM0E)}, {sr(sM0E)}, 24576")
    e(f"s_mul_i32 {sr(sT0)}, {sr(sH)}, 786432")
    e(f"s_mul_i32 {sr(sT1)}, {sr(sQt)}, 196608")
    e(f"s_add_u32 {sr(sT1)}, {sr(sT1)}, {sr(sT0)}")
    e(f"s_lshl_b32 {sr(sT2)}, {sr(sQt)}, 10")
    e(f"s_cmp_eq_u32 {sr(sT)}, 0")
    e("s_waitcnt lgkmcnt(0)")
    e(f"s_cselect_b32 {sr(S_KV)}, s6, s8")
    e(f"s_cselect_b32 {sr(S_KV+1)}, s7, s9")
    e(f"s_cselect_b32 {sr(S_E)}, s10, s12")
    e(f"s_cselect_b32 {sr(S_E+1)}, s11, s13")
    e(f"s_add_u32 {sr(S_KV)}, {sr(S_KV)}, {sr(sT1)}")
    e(f"s_addc_u32 {sr(S_KV+1)}, {sr(S_KV+1)}, 0")
    e(f"s_mov_b32 {sr(S_KV+2)}, 196608")
    e(f"s_mov_b32 {sr(S_KV+3)}, 0x00020000")
    e(f"s_add_u32 {sr(S_E)}, {sr(S_E)}, {sr(sT2)}")
    e(f"s_addc_u32 {sr(S_E+1)}, {sr(S_E+1)}, 0")
    e(f"s_sub_u32 {sr(S_E+2)}, 262144, {sr(sT2)}")
    e(f"s_mov_b32 {sr(S_E+3)}, 0x00020000")

    def phys(t):
        return ((t % 5) + 2) % 5

    def issue_kv(t):
        pb = 32768 * phys(t)
        e(f"s_add_u32 m0, {sr(sM0K)}, {pb}")
        e(f"s_mov_b32 {sr(sT3)}, {24576*t}")
        for i in range(3):
            e(f"buffer_load_dwordx4 {vr(vK+i)}, {sr(S_KV,4)}, {sr(sT3)} offen offset:{1024*i} nt lds")
        e(f"s_add_u32 m0, {sr(sM0E)}, {pb}")
        e(f"s_mov_b32 {sr(sT3)}, {128*t}")
        e(f"buffer_load_dwordx4 {vr(vE)}, {sr(S_E,4)}, {sr(sT3)} offen lds")

    def issue_q(j):
        e(f"s_lshl_b32 {sr(sT3)}, {sr(sW)}, 12")
        e(f"s_add_u32 {sr(sT3)}, {sr(sT3)}, {32768*j}")
        e(f"s_mov_b32 m0, {sr(sT3)}")
        e("s_nop 0")
        for i in range(4):
            e(f"buffer_load_dwordx4 {vr(vQd+(i&1))}, {sr(S_Q,4)}, {sr(sT3)} offen offset:{1024*i} nt lds")

    if opt.flag == "ws":
        e(f"s_mul_i32 {sr(sT1)}, {sr(sH)}, 4352")
        e(f"s_add_u32 {sr(sT1)}, {sr(sT1)}, 0x800000")
        e(f"s_add_u32 {sr(S_F)}, s18, {sr(sT1)}")
        e(f"s_addc_u32 {sr(S_F+1)}, s19, 0")
        e(f"s_mov_b32 {sr(S_F+2)}, 32")
        e(f"s_mov_b32 {sr(S_F+3)}, 0x00020000")
        e(f"v_lshlrev_b32 {vr(vFl)}, 2, {vr(vLane)}")
        e(f"s_or_b32 {sr(sT1)}, {sr(sSub)}, {sr(sW)}")
        e(f"s_cmp_lg_u32 {sr(sT1)}, 0")
        e("s_cbranch_scc1 L_NOCLR")
        e(f"v_mov_b32 {vr(vT+2)}, 0")
        e(f"buffer_store_dword {vr(vT+2)}, {vr(vFl)}, {sr(S_F,4)}, 0 offen sc1")
        g.label("L_NOCLR")
    for t in range(5):
        issue_kv(t)

    c("remaining SRDs")
    e(f"s_mul_i32 {sr(sT1)}, {sr(sSub)}, 98304")
    e(f"s_add_u32 {sr(sT1)}, {sr(sT1)}, {sr(sT0)}")
    e(f"s_add_u32 {sr(S_Q)}, s4, {sr(sT1)}")
    e(f"s_addc_u32 {sr(S_Q+1)}, s5, 0")
    e(f"s_mov_b32 {sr(S_Q+2)}, 98304")
    e(f"s_mov_b32 {sr(S_Q+3)}, 0x00020000")
    e(f"s_add_u32 {sr(S_O)}, s14, {sr(sT1)}")
    e(f"s_addc_u32 {sr(S_O+1)}, s15, 0")
    e(f"s_mov_b32 {sr(S_O+2)}, 98304")
    e(f"s_mov_b32 {sr(S_O+3)}, 0x00020000")
    e(f"s_mul_i32 {sr(sT1)}, {sr(sH)}, 196608")
    e(f"s_add_u32 {sr(S_P)}, s18, {sr(sT1)}")
    e(f"s_addc_u32 {sr(S_P+1)}, s19, 0")
    e(f"s_mov_b32 {sr(S_P+2)}, 196608")
    e(f"s_mov_b32 {sr(S_P+3)}, 0x00020000")
    e(f"s_mov_b32 {sr(S_D)}, s16")
    e(f"s_mov_b32 {sr(S_D+1)}, s17")
    e(f"s_mov_b32 {sr(S_D+2)}, 256")
    e(f"s_mov_b32 {sr(S_D+3)}, 0x00020000")
    e(f"s_mov_b32 {sr(sLO)}, 0x00003f80")
    e(f"s_mov_b32 {sr(sHI)}, 0x3f800000")
    cst = math.log2(math.e) / math.sqrt(192.0)
    import struct
    e(f"s_mov_b32 {sr(sC)}, 0x{struct.unpack('<I', struct.pack('<f', cst))[0]:08x}")
    for i in range(4):
        e(f"s_mov_b32 {sr(sI+i)}, {3072*i}")

    c("Q DMA patterns: (lane>>3)*128 + (((lane&7) ^ (4par + lane>>4))*16)")
    e(f"v_lshrrev_b32 {vr(vT+2)}, 4, {vr(vLane)}")
    e(f"v_xor_b32 {vr(vT+3)}, {vr(vT+2)}, {vr(vT+4)}")
    e(f"v_lshlrev_b32 {vr(vT+3)}, 4, {vr(vT+3)}")
    e(f"v_lshl_add_u32 {vr(vQd)}, {vr(vT)}, 7, {vr(vT+3)}")
    e(f"v_xor_b32 {vr(vQd+1)}, 64, {vr(vQd)}")

    c("E frag addrs: (32rh + l&15)*128 + (((4ks+g) ^ ((l&15)>>1))*16)")
    e(f"v_and_b32 {vr(vT+3)}, 15, {vr(vLane)}")
    e(f"v_lshrrev_b32 {vr(vT+5)}, 1, {vr(vT+3)}")
    e(f"v_xor_b32 {vr(vT+5)}, {vr(vT+5)}, {vr(vT+2)}")
    e(f"v_lshlrev_b32 {vr(vT+5)}, 4, {vr(vT+5)}")
    e(f"v_lshl_add_u32 {vr(vT+5)}, {vr(vT+3)}, 7, {vr(vT+5)}")
    e(f"s_lshl_b32 {sr(sT1)}, {sr(sRH)}, 12")
    e(f"v_add_u32 {vr(vEa)}, {sr(sT1)}, {vr(vT+5)}")
    e(f"v_xor_b32 {vr(vEa+1)}, 64, {vr(vEa)}")
    for s_ in (1, 2):
        e(f"v_add_u32 {vr(vEa+2*s_)}, {65536*s_}, {vr(vEa)}")
        e(f"v_add_u32 {vr(vEa+2*s_+1)}, {65536*s_}, {vr(vEa+1)}")

    c("K frag addrs: (8g + r4)*384 + ((u*32) ^ (f<<5)) + 8*c4 ; u = 3cg+ct ; f = bit1(r4) | (g&1)<<1")
    e(f"v_bfe_u32 {vr(vT+5)}, {vr(vLane)}, 2, 2")
    e(f"v_lshl_add_u32 {vr(vT+5)}, {vr(vT+2)}, 3, {vr(vT+5)}")
    e(f"v_mul_u32_u24 {vr(vT+5)}, 384, {vr(vT+5)}")
    e(f"v_and_b32 {vr(vT+6)}, 3, {vr(vLane)}")
    e(f"v_lshl_add_u32 {vr(vT+5)}, {vr(vT+6)}, 3, {vr(vT+5)}")
    e(f"v_bfe_u32 {vr(vT+6)}, {vr(vLane)}, 3, 2")
    e(f"v_lshlrev_b32 {vr(vT+6)}, 5, {vr(vT+6)}")
    e(f"s_mul_i32 {sr(sT1)}, {sr(sCG)}, 96")
    for ct in range(3):
        e(f"s_add_u32 {sr(sT2)}, {sr(sT1)}, {32*ct}")
        e(f"v_xad_u32 {vr(vKa+ct)}, {vr(vT+6)}, {sr(sT2)}, {vr(vT+5)}")
    for s_ in (1, 2):
        for ct in range(3):
            e(f"v_add_u32 {vr(vKa+3*s_+ct)}, {65536*s_}, {vr(vKa+ct)}")

    c("partial store voffset")
    e(f"s_mul_i32 {sr(sT1)}, {sr(sRH)}, 12288")
    e(f"v_lshlrev_b32 {vr(vT+5)}, 4, {vr(vLane)}")
    e(f"v_add_u32 {vr(vPo)}, {sr(sT1)}, {vr(vT+5)}")
    e(f"s_cmp_eq_u32 {sr(sT)}, 0")
    e("s_cbranch_scc1 L_PO_DONE")
    e(f"v_and_b32 {vr(vT+5)}, 3, {vr(vLane)}")
    e(f"v_bfe_u32 {vr(vT+6)}, {vr(vLane)}, 2, 1")
    e(f"v_lshl_or_b32 {vr(vT+5)}, {vr(vT+6)}, 3, {vr(vT+5)}")
    e(f"v_bfe_u32 {vr(vT+6)}, {vr(vLane)}, 3, 1")
    e(f"v_lshl_or_b32 {vr(vT+5)}, {vr(vT+6)}, 2, {vr(vT+5)}")
    e(f"v_bfe_u32 {vr(vT+6)}, {vr(vLane)}, 4, 1")
    e(f"v_lshl_or_b32 {vr(vT+5)}, {vr(vT+6)}, 5, {vr(vT+5)}")
    e(f"v_lshlrev_b32 {vr(vT+5)}, 4, {vr(vT+5)}")
    e(f"v_lshrrev_b32 {vr(vT+6)}, 5, {vr(vLane)}")
    e(f"v_lshl_add_u32 {vr(vT+5)}, {vr(vT+6)}, 10, {vr(vT+5)}")
    e(f"s_lshl_b32 {sr(sT1)}, {sr(sRH)}, 11")
    e(f"v_add_u32 {vr(vPo)}, {sr(sT1)}, {vr(vT+5)}")
    g.label("L_PO_DONE")

    IMG = 98304
    c("gather / frag addresses")
    e(f"v_lshlrev_b32 {vr(vG)}, 4, v0")
    e(f"v_add_u32 {vr(vGw)}, {IMG}, {vr(vG)}")
    e(f"v_lshlrev_b32 {vr(vFr)}, 4, {vr(vLane)}")
    e(f"v_add_u32 {vr(vFr)}, {IMG}, {vr(vFr)}")

    c("Q frag addrs: 12288w + Lam*128 + (((2*s4+hh) ^ ((Lam>>1)&7))*16), Lam = 3q+L")
    e(f"s_mul_i32 {sr(sT1)}, {sr(sW)}, 12288")
    e(f"v_and_b32 {vr(vT+3)}, 31, {vr(vLane)}")
    e(f"v_lshrrev_b32 {vr(vT+2)}, 5, {vr(vLane)}")
    e(f"v_mul_u32_u24 {vr(vT+5)}, 3, {vr(vT+3)}")
    for L in range(3):
        e(f"v_add_u32 {vr(vT+6)}, {L}, {vr(vT+5)}")
        e(f"v_bfe_u32 {vr(vT+4)}, {vr(vT+6)}, 1, 3")
        e(f"v_xor_b32 {vr(vT+4)}, {vr(vT+4)}, {vr(vT+2)}")
        e(f"v_lshlrev_b32 {vr(vT+4)}, 4, {vr(vT+4)}")
        e(f"v_lshl_add_u32 {vr(vT+6)}, {vr(vT+6)}, 7, {sr(sT1)}")
        for s4 in range(4):
            if s4 == 0:
                e(f"v_add_u32 {vr(vQa+4*L)}, {vr(vT+4)}, {vr(vT+6)}")
            elif s4 < 3:
                e(f"v_xad_u32 {vr(vQa+4*L+s4)}, {vr(vT+4)}, {32*s4}, {vr(vT+6)}")
            else:
                e(f"v_xor_b32 {vr(vT+1)}, 96, {vr(vT+4)}")
                e(f"v_add_u32 {vr(vQa+4*L+s4)}, {vr(vT+1)}, {vr(vT+6)}")
    c("O staging write addrs: 12288w + q*384 + (((2*c2+hh) ^ (q&7))*16)")
    e(f"v_and_b32 {vr(vT+4)}, 7, {vr(vT+3)}")
    e(f"v_xor_b32 {vr(vT+4)}, {vr(vT+4)}, {vr(vT+2)}")
    e(f"v_lshlrev_b32 {vr(vT+4)}, 4, {vr(vT+4)}")
    e(f"v_lshl_add_u32 {vr(vT+6)}, {vr(vT+5)}, 7, {sr(sT1)}")
    for c2 in range(4):
        if c2 == 0:
            e(f"v_add_u32 {vr(vOw)}, {vr(vT+4)}, {vr(vT+6)}")
        elif c2 < 3:
            e(f"v_xad_u32 {vr(vOw+c2)}, {vr(vT+4)}, {32*c2}, {vr(vT+6)}")
        else:
            e(f"v_xor_b32 {vr(vT+1)}, 96, {vr(vT+4)}")
            e(f"v_add_u32 {vr(vOw+c2)}, {vr(vT+1)}, {vr(vT+6)}")
    c("O staging read addr: 12288w + (l>>3)*384 + (((l&7)^(l>>3))*16) ; global: 12288w + (l>>3)*384 + (l&7)*16")
    e(f"v_lshrrev_b32 {vr(vT)}, 3, {vr(vLane)}")
    e(f"v_and_b32 {vr(vT+4)}, 7, {vr(vLane)}")
    e(f"v_mul_u32_u24 {vr(vT+5)}, 384, {vr(vT)}")
    e(f"v_add_u32 {vr(vT+5)}, {sr(sT1)}, {vr(vT+5)}")
    e(f"v_lshl_add_u32 {vr(vOg)}, {vr(vT+4)}, 4, {vr(vT+5)}")
    e(f"v_xor_b32 {vr(vT+4)}, {vr(vT+4)}, {vr(vT)}")
    e(f"v_lshl_add_u32 {vr(vOr)}, {vr(vT+4)}, 4, {vr(vT+5)}")

    QPRE = opt.qpre

    def acc(rt, ct):
        return vAcc + (rt * 3 + ct) * 4

    def ef(ks, rt):
        return vEf + (ks * 2 + rt) * 4

    def kf(ct, ks):
        return vKf + (ct * 2 + ks) * 4

    def phase1(isV):
        issued = 5
        for t in range(8):
            c(f"---- tile {t}")
            allowed = (issued - (t + 1)) * 4
            e(f"s_waitcnt vmcnt({allowed})")
            e("s_barrier")
            if t == 0:
                stamp(1)
            if 1 <= t <= 3:
                issue_kv(t + 4)
                issued += 1
            elif t >= 4 and (t - 4) < QPRE and t <= 6:
                issue_q(t - 4)
                issued += 1
            if opt.flag == "ws" and t == 5:
                lab = f"L_NOCHK_{int(isV)}"
                e(f"s_cmp_lg_u32 {sr(sW)}, 0")
                e(f"s_cbranch_scc1 {lab}")
                e("s_mov_b64 exec, 1")
                e(f"buffer_load_dword {vr(vFl+1)}, {vr(vFl+2)}, {sr(S_D,4)}, 0 offen sc1")
                e("s_mov_b64 exec, -1")
                g.label(lab)
            p = phys(t)
            st, lo = p // 2, (p % 2) * 32768
            nrd = 0
            for ks in range(2):
                for rt in range(2):
                    e(f"ds_read_b128 {vr(ef(ks,rt),4)}, {vr(vEa+2*st+ks)} offset:{lo+24576+2048*rt}")
                for ct in range(3):
                    for hf in range(2):
                        e(f"ds_read_b64_tr_b16 {vr(kf(ct,ks)+2*hf,2)}, {vr(vKa+3*st+ct)} offset:{lo+12288*ks+1536*hf}")
            for ks in range(2):
                for ct in range(3):
                    done = ks * 8 + 2 + 2 * (ct + 1)
                    e(f"s_waitcnt lgkmcnt({16-done})")
                    for rt in range(2):
                        a = acc(rt, ct)
                        cin = "0" if (t == 0 and ks == 0) else vr(a, 4)
                        if isV:
                            e(f"v_mfma_f32_16x16x32_bf16 {vr(a,4)}, {vr(ef(ks,rt),4)}, {vr(kf(ct,ks),4)}, {cin}")
                        else:
                            e(f"v_mfma_f32_16x16x32_bf16 {vr(a,4)}, {vr(kf(ct,ks),4)}, {vr(ef(ks,rt),4)}, {cin}")
        stamp(2)
        c("---- epilogue: pack, swap, store partial")
        e(f"s_mul_i32 {sr(sT0)}, {sr(sSub)}, 24576")
        e(f"s_mul_i32 {sr(sT1)}, {sr(sCG)}, 3")
        e("s_nop 3")
        for ct in range(3):
            pk = vPk + 4 * ct
            if ct == 2:
                e("s_nop 1")
            e(f"v_cvt_pk_bf16_f32 {vr(pk)}, {vr(acc(0,ct))}, {vr(acc(0,ct)+1)}")
            e(f"v_cvt_pk_bf16_f32 {vr(pk+1)}, {vr(acc(0,ct)+2)}, {vr(acc(0,ct)+3)}")
            e(f"v_cvt_pk_bf16_f32 {vr(pk+2)}, {vr(acc(1,ct))}, {vr(acc(1,ct)+1)}")
            e(f"v_cvt_pk_bf16_f32 {vr(pk+3)}, {vr(acc(1,ct)+2)}, {vr(acc(1,ct)+3)}")
            e(f"s_add_u32 {sr(sT2)}, {sr(sT1)}, {ct}")
            if isV:
                e(f"s_lshr_b32 {sr(sT3)}, {sr(sT2)}, 1")
                e(f"s_lshl_b32 {sr(sT3)}, {sr(sT3)}, 12")
                e(f"s_and_b32 {sr(sT2)}, {sr(sT2)}, 1")
                e(f"s_lshl_b32 {sr(sT2)}, {sr(sT2)}, 8")
                e(f"s_add_u32 {sr(sT2)}, {sr(sT2)}, {sr(sT3)}")
            else:
                e(f"s_lshl_b32 {sr(sT2)}, {sr(sT2)}, 10")
            e(f"s_add_u32 {sr(sT2)}, {sr(sT2)}, {sr(sT0)}")
            op = "v_permlane32_swap_b32" if isV else "v_permlane16_swap_b32"
            e(f"{op} {vr(pk)}, {vr(pk+2)}")
            e(f"{op} {vr(pk+1)}, {vr(pk+3)}")
            e("s_nop 0")
            e(f"buffer_store_dwordx4 {vr(pk,4)}, {vr(vPo)}, {sr(S_P,4)}, {sr(sT2)} offen sc1")

    if opt.flag == "ws":
        e(f"s_lshl_b32 {sr(sT1)}, {sr(sH)}, 2")
        e(f"v_mov_b32 {vr(vFl+2)}, {sr(sT1)}")
        e(f"s_or_b32 {sr(sT1)}, {sr(sSub)}, {sr(sW)}")
        e(f"s_cmp_lg_u32 {sr(sT1)}, 0")
        e("s_cbranch_scc1 L_NOSIG")
        e("s_waitcnt vmcnt(20)")
        e("s_mov_b64 exec, 1")
        e(f"v_mov_b32 {vr(vT+2)}, 1")
        e(f"buffer_store_dword {vr(vT+2)}, {vr(vFl+2)}, {sr(S_D,4)}, 0 offen sc1")
        e("s_mov_b64 exec, -1")
        g.label("L_NOSIG")
    e(f"s_cmp_eq_u32 {sr(sT)}, 0")
    e("s_cbranch_scc0 L_P1_V")
    phase1(False)
    e("s_branch L_P1_DONE")
    g.label("L_P1_V")
    phase1(True)
    g.label("L_P1_DONE")

    nq_after = 3 - QPRE
    if opt.qafter == "before_flag":
        for j in range(QPRE, 3):
            issue_q(j)
        e(f"s_waitcnt vmcnt({4*nq_after})")
    else:
        e("s_waitcnt vmcnt(0)")
    e("s_barrier")
    stamp(3)

    e(f"s_cmp_lg_u32 {sr(sW)}, 0")
    e("s_cbranch_scc1 L_POLL_SKIP")
    if opt.flag == "ws":
        e(f"s_mov_b32 {sr(sCnt)}, 0")
        g.label("L_CHK")
        e(f"v_readfirstlane_b32 {sr(sT0)}, {vr(vFl+1)}")
        e(f"s_cmp_eq_u32 {sr(sT0)}, 1")
        e("s_cbranch_scc1 L_CHK_OK")
        e(f"s_add_u32 {sr(sCnt)}, {sr(sCnt)}, 1")
        e(f"s_cmp_gt_u32 {sr(sCnt)}, 200000")
        e("s_cbranch_scc1 L_CHK_OK")
        e("s_sleep 4")
        e("s_mov_b64 exec, 1")
        e(f"buffer_load_dword {vr(vFl+1)}, {vr(vFl+2)}, {sr(S_D,4)}, 0 offen sc1")
        e("s_mov_b64 exec, -1")
        e("s_waitcnt vmcnt(0)")
        e("s_branch L_CHK")
        g.label("L_CHK_OK")
        e("s_mov_b64 exec, 1")
        e(f"s_lshl_b32 {sr(sT0)}, {sr(sSub)}, 2")
        e(f"v_mov_b32 {vr(vT)}, {sr(sT0)}")
        e(f"v_mov_b32 {vr(vT+1)}, 1")
        e(f"buffer_store_dword {vr(vT+1)}, {vr(vT)}, {sr(S_F,4)}, 0 offen sc1")
        e("s_mov_b64 exec, 0xff")
        e(f"s_mov_b32 {sr(sCnt)}, 0")
        g.label("L_POLL")
        e(f"buffer_load_dword {vr(vT+3)}, {vr(vFl)}, {sr(S_F,4)}, 0 offen sc1")
        e(f"s_add_u32 {sr(sCnt)}, {sr(sCnt)}, 1")
        e("s_waitcnt vmcnt(0)")
        e(f"v_cmp_eq_u32 vcc, 1, {vr(vT+3)}")
        e("s_nop 1")
        e("s_cmp_eq_u32 vcc_lo, 0xff")
        e("s_cbranch_scc1 L_POLL_DONE")
        e(f"s_cmp_gt_u32 {sr(sCnt)}, 200000")
        e("s_cbranch_scc1 L_POLL_DONE")
        e("s_sleep 1")
        e("s_branch L_POLL")
    else:
        raise SystemExit("only ws flags supported now")
    g.label("L_POLL_DONE")
    e("s_mov_b64 exec, -1")
    g.label("L_POLL_SKIP")
    if opt.qafter == "after_flag":
        for j in range(QPRE, 3):
            issue_q(j)
    e("s_barrier")
    stamp(4)

    vGd = 128
    vS = 76
    def gd(k, j):
        return vGd + (k * 4 + j) * 4
    for k in range(6):
        tt, kk = k // 3, k % 3
        for j in range(4):
            e(f"s_mov_b32 {sr(sT0)}, {(tt*4+j)*24576 + kk*8192}")
            e(f"buffer_load_dwordx4 {vr(gd(k,j),4)}, {vr(vG)}, {sr(S_P,4)}, {sr(sT0)} offen sc1")

    def gsum(k, tmp):
        e(f"s_waitcnt vmcnt({24-4*(k+1)})")
        for j in range(4):
            for d in range(4):
                for hl in range(2):
                    a = tmp + 2 * d + hl
                    cin = "0" if j == 0 else vr(a)
                    e(f"v_dot2_f32_bf16 {vr(a)}, {vr(gd(k,j)+d)}, {sr(sHI if hl else sLO)}, {cin}")
        e("s_nop 2")
        for d in range(4):
            e(f"v_cvt_pk_bf16_f32 {vr(tmp+8+d)}, {vr(tmp+2*d)}, {vr(tmp+2*d+1)}")
        e(f"ds_write_b128 {vr(vGw)}, {vr(tmp+8,4)} offset:{8192*k}")

    for k in range(3):
        gsum(k, vS + 12 * k)
    e("s_waitcnt lgkmcnt(0)")
    e("s_barrier")
    stamp(5)

    vQf = 52
    vKP = 100
    vSa = 128
    vPf = 160
    NS = 6
    for s in range(12):
        e(f"ds_read_b128 {vr(vQf+4*s,4)}, {vr(vQa+s)}")
    seq = [(s, rt) for s in range(12) for rt in range(2)]
    def kp_read(n):
        s, rt = seq[n]
        e(f"ds_read_b128 {vr(vKP+4*(n%NS),4)}, {vr(vFr)} offset:{(rt*12+s)*1024}")
    for n in range(NS):
        kp_read(n)
    issued = NS
    for n in range(24):
        s, rt = seq[n]
        e(f"s_waitcnt lgkmcnt({min(15, issued-(n+1))})")
        a = vSa + 16 * rt
        cin = "0" if s == 0 else vr(a, 16)
        e(f"v_mfma_f32_32x32x16_bf16 {vr(a,16)}, {vr(vKP+4*(n%NS),4)}, {vr(vQf+4*s,4)}, {cin}")
        if issued < 24:
            kp_read(issued)
            issued += 1
    stamp(6)
    c("V gather sums")
    for k in range(3, 6):
        gsum(k, 224 + 0 if False else (52 + 12 * (k - 3)))
    stamp(7)
    c("softmax")
    vM, vM2, vSum, vSum2 = 88, 89, 90, 91
    e(f"v_max3_f32 {vr(vM)}, {vr(vSa)}, {vr(vSa+1)}, {vr(vSa+2)}")
    e(f"v_max3_f32 {vr(vM2)}, {vr(vSa+3)}, {vr(vSa+4)}, {vr(vSa+5)}")
    for i in range(6, 30, 4):
        e(f"v_max3_f32 {vr(vM)}, {vr(vM)}, {vr(vSa+i)}, {vr(vSa+i+1)}")
        e(f"v_max3_f32 {vr(vM2)}, {vr(vM2)}, {vr(vSa+i+2)}, {vr(vSa+i+3)}")
    e(f"v_max3_f32 {vr(vM)}, {vr(vM)}, {vr(vSa+30)}, {vr(vSa+31)}")
    e(f"v_max_f32 {vr(vM)}, {vr(vM)}, {vr(vM2)}")
    e(f"v_mov_b32 {vr(vM2)}, {vr(vM)}")
    e("s_nop 1")
    e(f"v_permlane32_swap_b32 {vr(vM)}, {vr(vM2)}")
    e("s_nop 1")
    e(f"v_max_f32 {vr(vM)}, {vr(vM)}, {vr(vM2)}")
    e(f"v_mul_f32 {vr(vM)}, {sr(sC)}, {vr(vM)}")
    for i in range(32):
        e(f"v_fma_f32 {vr(vSa+i)}, {vr(vSa+i)}, {sr(sC)}, -{vr(vM)}")
    for i in range(32):
        e(f"v_exp_f32 {vr(vSa+i)}, {vr(vSa+i)}")
    e("s_nop 0")
    e(f"v_add_f32 {vr(vSum)}, {vr(vSa)}, {vr(vSa+1)}")
    e(f"v_add_f32 {vr(vSum2)}, {vr(vSa+2)}, {vr(vSa+3)}")
    for i in range(4, 32, 2):
        e(f"v_add_f32 {vr(vSum)}, {vr(vSum)}, {vr(vSa+i)}")
        e(f"v_add_f32 {vr(vSum2)}, {vr(vSum2)}, {vr(vSa+i+1)}")
    e(f"v_add_f32 {vr(vSum)}, {vr(vSum)}, {vr(vSum2)}")
    e(f"v_mov_b32 {vr(vSum2)}, {vr(vSum)}")
    e("s_nop 1")
    e(f"v_permlane32_swap_b32 {vr(vSum)}, {vr(vSum2)}")
    e("s_nop 1")
    e(f"v_add_f32 {vr(vSum)}, {vr(vSum)}, {vr(vSum2)}")
    e(f"v_rcp_f32 {vr(vSum)}, {vr(vSum)}")
    e("s_nop 0")
    for i in range(32):
        e(f"v_mul_f32 {vr(vSa+i)}, {vr(vSa+i)}, {vr(vSum)}")
    for i in range(16):
        e(f"v_cvt_pk_bf16_f32 {vr(vPf+i)}, {vr(vSa+2*i)}, {vr(vSa+2*i+1)}")
    e("s_waitcnt lgkmcnt(0)")
    stamp(8)
    e("s_barrier")
    stamp(9)

    vVP = 100
    vOa = 128
    vOp = 52
    vOs = 208
    seq = [(jp, s, jj) for jp in range(3) for s in range(4) for jj in range(2)]
    VPB = 24576
    def vp_read(n):
        jp, s, jj = seq[n]
        e(f"ds_read_b128 {vr(vVP+4*(n%NS),4)}, {vr(vFr)} offset:{VPB+((2*jp+jj)*4+s)*1024}")
    stp = opt.stpol
    for n in range(NS):
        vp_read(n)
    issued = NS
    pend = []
    for n in range(NS):
        pend.append(('vp', n))

    def wait_for(tag):
        idx = pend.index(tag)
        after = len(pend) - idx - 1
        e(f"s_waitcnt lgkmcnt({min(15, after)})")
        del pend[:idx + 1]

    def epilogue(jp):
        ob = vOa if jp % 2 == 0 else 176
        for jj in range(2):
            a = ob + 16 * jj
            for a2 in range(2):
                pk = vOp + (jj * 2 + a2) * 4
                for d in range(4):
                    e(f"v_cvt_pk_bf16_f32 {vr(pk+d)}, {vr(a+8*a2+2*d)}, {vr(a+8*a2+2*d+1)}")
                e(f"ds_write_b128 {vr(vOw+2*jj+a2)}, {vr(pk,4)} offset:{128*jp}")
                pend.append(('w', jp, jj, a2))
        for i in range(4):
            e(f"ds_read_b128 {vr(vOs+16*jp+4*i,4)}, {vr(vOr)} offset:{128*jp+3072*i}")
            pend.append(('r', jp, i))

    def stores(jp):
        for i in range(4):
            if ('r', jp, i) in pend:
                wait_for(('r', jp, i))
            e(f"buffer_store_dwordx4 {vr(vOs+16*jp+4*i,4)}, {vr(vOg)}, {sr(S_O,4)}, {sr(sI+i)} offen offset:{128*jp} {stp}")

    for n in range(24):
        jp, s, jj = seq[n]
        if ('vp', n) in pend:
            wait_for(('vp', n))
        ob = vOa if jp % 2 == 0 else 176
        a = ob + 16 * jj
        cin = "0" if s == 0 else vr(a, 16)
        e(f"v_mfma_f32_32x32x16_bf16 {vr(a,16)}, {vr(vVP+4*(n%NS),4)}, {vr(vPf+4*s,4)}, {cin}")
        if issued < 24:
            vp_read(issued)
            pend.append(('vp', issued))
            issued += 1
        if n % 8 == 1 and jp >= 1:
            e("s_nop 7")
            e("s_nop 1")
            epilogue(jp - 1)
        if n % 8 == 5 and jp >= 1:
            stores(jp - 1)
    e("s_nop 7")
    e("s_nop 3")
    epilogue(2)
    stores(2)
    stamp(10)
    if TS:
        e("s_waitcnt vmcnt(0)")
        stamp(11)
        e("s_waitcnt lgkmcnt(0)")
        e(f"s_cmp_lg_u32 {sr(sW)}, 0")
        e("s_cbranch_scc1 L_END")
        e(f"s_add_u32 {sr(S_P)}, s18, 0x1000000")
        e(f"s_addc_u32 {sr(S_P+1)}, s19, 0")
        e(f"s_mov_b32 {sr(S_P+2)}, 0x10000")
        e("s_mov_b64 exec, 1")
        e("s_lshl_b32 s3, s2, 7")
        e(f"v_mov_b32 {vr(vT)}, s3")
        e(f"s_getreg_b32 {sr(sTS+24)}, hwreg(HW_REG_XCC_ID)")
        e(f"s_mov_b32 {sr(sTS+25)}, {sr(sCnt)}")
        for i in range(13):
            e(f"v_mov_b32 {vr(vT+1)}, {sr(sTS+2*i)}")
            e(f"v_mov_b32 {vr(vT+2)}, {sr(sTS+2*i+1)}")
            e(f"buffer_store_dwordx2 {vr(vT+1,2)}, {vr(vT)}, {sr(S_P,4)}, 0 offen offset:{8*i}")
            e("s_nop 1")
    g.label("L_END")
    e("s_endpgm")

    out = HEADER.format(n=NAME) + "\n".join(g.lines) + FOOTER.format(n=NAME, vgpr=256, acc=256)
    return out


if __name__ == "__main__":
    ap = argparse.ArgumentParser()
    ap.add_argument("-o", default=f"cdna_kernels/{NAME}.s")
    ap.add_argument("--ts", type=int, default=0)
    ap.add_argument("--qpre", type=int, default=1)
    ap.add_argument("--qafter", default="before_flag")
    ap.add_argument("--flag", default="ws")
    ap.add_argument("--stpol", default="sc1")
    opt = ap.parse_args()
    open(opt.o, "w").write(gen(opt))
```

```python
import sys, math, argparse

NAME = "standalone__low_rank_proj_linformer__prompt"

HEADER = """; Kernarg layout for this problem (64 bytes, ptrs only, base s[0:1]):
;   offset  56: d_ws      268435456 bytes workspace
; @launch grid=(256,1,1) block=(512,1,1) lds=163840
.amdgcn_target "amdgcn-amd-amdhsa--gfx950"
.text
.globl {n}_kernel
.p2align 8
.type {n}_kernel,@function
{n}_kernel:
"""

FOOTER = """
.section .rodata,"a"
.p2align 6
.amdhsa_kernel {n}_kernel
  .amdhsa_next_free_vgpr {vgpr}
  .amdhsa_next_free_sgpr 102
  .amdhsa_accum_offset {acc}
  .amdhsa_group_segment_fixed_size 0
  .amdhsa_kernarg_size 64
  .amdhsa_user_sgpr_count 2
  .amdhsa_user_sgpr_kernarg_segment_ptr 1
  .amdhsa_system_sgpr_workgroup_id_x 1
.end_amdhsa_kernel
"""


class G:
    def __init__(self):
        self.lines = []
        self.maxv = 0

    def e(self, s):
        self.lines.append("    " + s)

    def c(self, s):
        self.lines.append("    ; " + s)

    def label(self, s):
        self.lines.append(s + ":")


def vr(a, n=1):
    return f"v{a}" if n == 1 else f"v[{a}:{a+n-1}]"


def sr(a, n=1):
    return f"s{a}" if n == 1 else f"s[{a}:{a+n-1}]"


def gen(opt):
    g = G()
    e, c = g.e, g.c
    TS = opt.ts

    S_KV, S_E, S_Q, S_O, S_P, S_D = 20, 24, 28, 32, 36, 40
    sW, sH, sSub, sT, sQt = 44, 45, 46, 47, 48
    sT0, sT1, sT2, sT3 = 49, 50, 51, 52
    sRH, sCG = 53, 54
    sLO, sHI = 55, 56
    sC = 57
    sI = 58
    sM0K, sM0E = 62, 63
    sCnt = 64
    S_F = 96
    sTS = 66

    vLane = 1
    vK = 2
    vE = 5
    vQd = 6
    vEa = 8
    vKa = 14
    vPo = 23
    vG = 24
    vT = 25
    vQa = 32
    vOw = 44
    vOr = 48
    vOg = 49
    vFr = 50
    vGw = 51
    vFl = 124
    vAcc = 52
    vEf = 76
    vKf = 128
    vPk = 112

    def stamp(i):
        if TS:
            e(f"s_memrealtime {sr(sTS+2*i,2)}")

    e("s_cmp_ge_u32 s2, 256")
    e("s_cbranch_scc1 L_END")
    stamp(0)
    e("s_load_dwordx16 s[4:19], s[0:1], 0")
    e(f"v_and_b32 {vr(vLane)}, 63, v0")
    e(f"v_lshrrev_b32 {vr(vT)}, 6, v0")
    e(f"s_and_b32 {sr(sH)}, s2, 31")
    e(f"v_readfirstlane_b32 {sr(sW)}, {vr(vT)}")
    e(f"s_lshr_b32 {sr(sSub)}, s2, 5")
    e(f"s_lshr_b32 {sr(sT)}, {sr(sSub)}, 2")
    e(f"s_and_b32 {sr(sQt)}, {sr(sSub)}, 3")
    e(f"s_and_b32 {sr(sRH)}, {sr(sW)}, 1")
    e(f"s_lshr_b32 {sr(sCG)}, {sr(sW)}, 1")
    e(f"v_lshrrev_b32 {vr(vT)}, 3, {vr(vLane)}")
    e(f"v_lshlrev_b32 {vr(vT+1)}, 4, {vr(vLane)}")
    e(f"s_mul_i32 {sr(sM0K)}, {sr(sW)}, 3072")
    e(f"s_lshl_b32 {sr(sT0)}, {sr(sRH)}, 6")
    e(f"v_xor_b32 {vr(vT+1)}, {sr(sT0)}, {vr(vT+1)}")
    for i in range(3):
        e(f"v_add_u32 {vr(vT+2)}, {8*i}, {vr(vT)}")
        e(f"v_mul_u32_u24 {vr(vT+2)}, 11, {vr(vT+2)}")
        e(f"v_bfe_u32 {vr(vT+2)}, {vr(vT+2)}, 6, 1")
        e(f"v_lshlrev_b32 {vr(vT+2)}, 5, {vr(vT+2)}")
        e(f"v_xad_u32 {vr(vK+i)}, {vr(vT+1)}, {vr(vT+2)}, {sr(sM0K)}")
    e(f"s_lshl_b32 {sr(sT0)}, {sr(sW)}, 3")
    e(f"v_add_u32 {vr(vT+2)}, {sr(sT0)}, {vr(vT)}")
    e(f"v_bfe_u32 {vr(vT+3)}, {vr(vT+2)}, 1, 3")
    e(f"v_and_b32 {vr(vT+4)}, 7, {vr(vLane)}")
    e(f"v_xor_b32 {vr(vT+3)}, {vr(vT+3)}, {vr(vT+4)}")
    e(f"v_lshlrev_b32 {vr(vT+3)}, 4, {vr(vT+3)}")
    e(f"v_lshl_add_u32 {vr(vE)}, {vr(vT+2)}, 12, {vr(vT+3)}")
    e(f"s_lshl_b32 {sr(sM0E)}, {sr(sW)}, 10")
    e(f"s_add_u32 {sr(sM0E)}, {sr(sM0E)}, 24576")
    e(f"s_mul_i32 {sr(sT0)}, {sr(sH)}, 786432")
    e(f"s_mul_i32 {sr(sT1)}, {sr(sQt)}, 196608")
    e(f"s_add_u32 {sr(sT1)}, {sr(sT1)}, {sr(sT0)}")
    e(f"s_lshl_b32 {sr(sT2)}, {sr(sQt)}, 10")
    e(f"s_cmp_eq_u32 {sr(sT)}, 0")
    e("s_waitcnt lgkmcnt(0)")
    e(f"s_cselect_b32 {sr(S_KV)}, s6, s8")
    e(f"s_cselect_b32 {sr(S_KV+1)}, s7, s9")
    e(f"s_cselect_b32 {sr(S_E)}, s10, s12")
    e(f"s_cselect_b32 {sr(S_E+1)}, s11, s13")
    e(f"s_add_u32 {sr(S_KV)}, {sr(S_KV)}, {sr(sT1)}")
    e(f"s_addc_u32 {sr(S_KV+1)}, {sr(S_KV+1)}, 0")
    e(f"s_mov_b32 {sr(S_KV+2)}, 196608")
    e(f"s_mov_b32 {sr(S_KV+3)}, 0x00020000")
    e(f"s_add_u32 {sr(S_E)}, {sr(S_E)}, {sr(sT2)}")
    e(f"s_addc_u32 {sr(S_E+1)}, {sr(S_E+1)}, 0")
    e(f"s_sub_u32 {sr(S_E+2)}, 262144, {sr(sT2)}")
    e(f"s_mov_b32 {sr(S_E+3)}, 0x00020000")

    def phys(t):
        return ((t % 5) + 2) % 5

    def issue_kv(t):
        pb = 32768 * phys(t)
        e(f"s_add_u32 m0, {sr(sM0K)}, {pb}")
        e(f"s_mov_b32 {sr(sT3)}, {24576*t}")
        for i in range(3):
            e(f"buffer_load_dwordx4 {vr(vK+i)}, {sr(S_KV,4)}, {sr(sT3)} offen offset:{1024*i} nt lds")
        e(f"s_add_u32 m0, {sr(sM0E)}, {pb}")
        e(f"s_mov_b32 {sr(sT3)}, {128*t}")
        e(f"buffer_load_dwordx4 {vr(vE)}, {sr(S_E,4)}, {sr(sT3)} offen lds")

    def issue_q(j):
        e(f"s_lshl_b32 {sr(sT3)}, {sr(sW)}, 12")
        e(f"s_add_u32 {sr(sT3)}, {sr(sT3)}, {32768*j}")
        e(f"s_mov_b32 m0, {sr(sT3)}")
        e("s_nop 0")
        for i in range(4):
            e(f"buffer_load_dwordx4 {vr(vQd+(i&1))}, {sr(S_Q,4)}, {sr(sT3)} offen offset:{1024*i} nt lds")

    if opt.flag == "ws":
        e(f"s_mul_i32 {sr(sT1)}, {sr(sH)}, 4352")
        e(f"s_add_u32 {sr(sT1)}, {sr(sT1)}, 0x800000")
        e(f"s_add_u32 {sr(S_F)}, s18, {sr(sT1)}")
        e(f"s_addc_u32 {sr(S_F+1)}, s19, 0")
        e(f"s_mov_b32 {sr(S_F+2)}, 32")
        e(f"s_mov_b32 {sr(S_F+3)}, 0x00020000")
        e(f"v_lshlrev_b32 {vr(vFl)}, 2, {vr(vLane)}")
        e(f"s_or_b32 {sr(sT1)}, {sr(sSub)}, {sr(sW)}")
        e(f"s_cmp_lg_u32 {sr(sT1)}, 0")
        e("s_cbranch_scc1 L_NOCLR")
        e(f"v_mov_b32 {vr(vT+2)}, 0")
        e(f"buffer_store_dword {vr(vT+2)}, {vr(vFl)}, {sr(S_F,4)}, 0 offen sc1")
        g.label("L_NOCLR")
    for t in range(5):
        issue_kv(t)

    c("remaining SRDs")
    e(f"s_mul_i32 {sr(sT1)}, {sr(sSub)}, 98304")
    e(f"s_add_u32 {sr(sT1)}, {sr(sT1)}, {sr(sT0)}")
    e(f"s_add_u32 {sr(S_Q)}, s4, {sr(sT1)}")
    e(f"s_addc_u32 {sr(S_Q+1)}, s5, 0")
    e(f"s_mov_b32 {sr(S_Q+2)}, 98304")
    e(f"s_mov_b32 {sr(S_Q+3)}, 0x00020000")
    e(f"s_add_u32 {sr(S_O)}, s14, {sr(sT1)}")
    e(f"s_addc_u32 {sr(S_O+1)}, s15, 0")
    e(f"s_mov_b32 {sr(S_O+2)}, 98304")
    e(f"s_mov_b32 {sr(S_O+3)}, 0x00020000")
    e(f"s_mul_i32 {sr(sT1)}, {sr(sH)}, 196608")
    e(f"s_add_u32 {sr(S_P)}, s18, {sr(sT1)}")
    e(f"s_addc_u32 {sr(S_P+1)}, s19, 0")
    e(f"s_mov_b32 {sr(S_P+2)}, 196608")
    e(f"s_mov_b32 {sr(S_P+3)}, 0x00020000")
    e(f"s_mov_b32 {sr(S_D)}, s16")
    e(f"s_mov_b32 {sr(S_D+1)}, s17")
    e(f"s_mov_b32 {sr(S_D+2)}, 256")
    e(f"s_mov_b32 {sr(S_D+3)}, 0x00020000")
    e(f"s_mov_b32 {sr(sLO)}, 0x00003f80")
    e(f"s_mov_b32 {sr(sHI)}, 0x3f800000")
    cst = math.log2(math.e) / math.sqrt(192.0)
    import struct
    e(f"s_mov_b32 {sr(sC)}, 0x{struct.unpack('<I', struct.pack('<f', cst))[0]:08x}")
    for i in range(4):
        e(f"s_mov_b32 {sr(sI+i)}, {3072*i}")

    c("Q DMA patterns: (lane>>3)*128 + (((lane&7) ^ (4par + lane>>4))*16)")
    e(f"v_lshrrev_b32 {vr(vT+2)}, 4, {vr(vLane)}")
    e(f"v_xor_b32 {vr(vT+3)}, {vr(vT+2)}, {vr(vT+4)}")
    e(f"v_lshlrev_b32 {vr(vT+3)}, 4, {vr(vT+3)}")
    e(f"v_lshl_add_u32 {vr(vQd)}, {vr(vT)}, 7, {vr(vT+3)}")
    e(f"v_xor_b32 {vr(vQd+1)}, 64, {vr(vQd)}")

    c("E frag addrs: (32rh + l&15)*128 + (((4ks+g) ^ ((l&15)>>1))*16)")
    e(f"v_and_b32 {vr(vT+3)}, 15, {vr(vLane)}")
    e(f"v_lshrrev_b32 {vr(vT+5)}, 1, {vr(vT+3)}")
    e(f"v_xor_b32 {vr(vT+5)}, {vr(vT+5)}, {vr(vT+2)}")
    e(f"v_lshlrev_b32 {vr(vT+5)}, 4, {vr(vT+5)}")
    e(f"v_lshl_add_u32 {vr(vT+5)}, {vr(vT+3)}, 7, {vr(vT+5)}")
    e(f"s_lshl_b32 {sr(sT1)}, {sr(sRH)}, 12")
    e(f"v_add_u32 {vr(vEa)}, {sr(sT1)}, {vr(vT+5)}")
    e(f"v_xor_b32 {vr(vEa+1)}, 64, {vr(vEa)}")
    for s_ in (1, 2):
        e(f"v_add_u32 {vr(vEa+2*s_)}, {65536*s_}, {vr(vEa)}")
        e(f"v_add_u32 {vr(vEa+2*s_+1)}, {65536*s_}, {vr(vEa+1)}")

    c("K frag addrs: (8g + r4)*384 + ((u*32) ^ (f<<5)) + 8*c4 ; u = 3cg+ct ; f = bit1(r4) | (g&1)<<1")
    e(f"v_bfe_u32 {vr(vT+5)}, {vr(vLane)}, 2, 2")
    e(f"v_lshl_add_u32 {vr(vT+5)}, {vr(vT+2)}, 3, {vr(vT+5)}")
    e(f"v_mul_u32_u24 {vr(vT+5)}, 384, {vr(vT+5)}")
    e(f"v_and_b32 {vr(vT+6)}, 3, {vr(vLane)}")
    e(f"v_lshl_add_u32 {vr(vT+5)}, {vr(vT+6)}, 3, {vr(vT+5)}")
    e(f"v_bfe_u32 {vr(vT+6)}, {vr(vLane)}, 3, 2")
    e(f"v_lshlrev_b32 {vr(vT+6)}, 5, {vr(vT+6)}")
    e(f"s_mul_i32 {sr(sT1)}, {sr(sCG)}, 96")
    for ct in range(3):
        e(f"s_add_u32 {sr(sT2)}, {sr(sT1)}, {32*ct}")
        e(f"v_xad_u32 {vr(vKa+ct)}, {vr(vT+6)}, {sr(sT2)}, {vr(vT+5)}")
    for s_ in (1, 2):
        for ct in range(3):
            e(f"v_add_u32 {vr(vKa+3*s_+ct)}, {65536*s_}, {vr(vKa+ct)}")

    c("partial store voffset")
    e(f"s_mul_i32 {sr(sT1)}, {sr(sRH)}, 12288")
    e(f"v_lshlrev_b32 {vr(vT+5)}, 4, {vr(vLane)}")
    e(f"v_add_u32 {vr(vPo)}, {sr(sT1)}, {vr(vT+5)}")
    e(f"s_cmp_eq_u32 {sr(sT)}, 0")
    e("s_cbranch_scc1 L_PO_DONE")
    e(f"v_and_b32 {vr(vT+5)}, 3, {vr(vLane)}")
    e(f"v_bfe_u32 {vr(vT+6)}, {vr(vLane)}, 2, 1")
    e(f"v_lshl_or_b32 {vr(vT+5)}, {vr(vT+6)}, 3, {vr(vT+5)}")
    e(f"v_bfe_u32 {vr(vT+6)}, {vr(vLane)}, 3, 1")
    e(f"v_lshl_or_b32 {vr(vT+5)}, {vr(vT+6)}, 2, {vr(vT+5)}")
    e(f"v_bfe_u32 {vr(vT+6)}, {vr(vLane)}, 4, 1")
    e(f"v_lshl_or_b32 {vr(vT+5)}, {vr(vT+6)}, 5, {vr(vT+5)}")
    e(f"v_lshlrev_b32 {vr(vT+5)}, 4, {vr(vT+5)}")
    e(f"v_lshrrev_b32 {vr(vT+6)}, 5, {vr(vLane)}")
    e(f"v_lshl_add_u32 {vr(vT+5)}, {vr(vT+6)}, 10, {vr(vT+5)}")
    e(f"s_lshl_b32 {sr(sT1)}, {sr(sRH)}, 11")
    e(f"v_add_u32 {vr(vPo)}, {sr(sT1)}, {vr(vT+5)}")
    g.label("L_PO_DONE")

    IMG = 98304
    c("gather / frag addresses")
    e(f"v_lshlrev_b32 {vr(vG)}, 4, v0")
    e(f"v_add_u32 {vr(vGw)}, {IMG}, {vr(vG)}")
    e(f"v_lshlrev_b32 {vr(vFr)}, 4, {vr(vLane)}")
    e(f"v_add_u32 {vr(vFr)}, {IMG}, {vr(vFr)}")

    c("Q frag addrs: 12288w + Lam*128 + (((2*s4+hh) ^ ((Lam>>1)&7))*16), Lam = 3q+L")
    e(f"s_mul_i32 {sr(sT1)}, {sr(sW)}, 12288")
    e(f"v_and_b32 {vr(vT+3)}, 31, {vr(vLane)}")
    e(f"v_lshrrev_b32 {vr(vT+2)}, 5, {vr(vLane)}")
    e(f"v_mul_u32_u24 {vr(vT+5)}, 3, {vr(vT+3)}")
    for L in range(3):
        e(f"v_add_u32 {vr(vT+6)}, {L}, {vr(vT+5)}")
        e(f"v_bfe_u32 {vr(vT+4)}, {vr(vT+6)}, 1, 3")
        e(f"v_xor_b32 {vr(vT+4)}, {vr(vT+4)}, {vr(vT+2)}")
        e(f"v_lshlrev_b32 {vr(vT+4)}, 4, {vr(vT+4)}")
        e(f"v_lshl_add_u32 {vr(vT+6)}, {vr(vT+6)}, 7, {sr(sT1)}")
        for s4 in range(4):
            if s4 == 0:
                e(f"v_add_u32 {vr(vQa+4*L)}, {vr(vT+4)}, {vr(vT+6)}")
            elif s4 < 3:
                e(f"v_xad_u32 {vr(vQa+4*L+s4)}, {vr(vT+4)}, {32*s4}, {vr(vT+6)}")
            else:
                e(f"v_xor_b32 {vr(vT+1)}, 96, {vr(vT+4)}")
                e(f"v_add_u32 {vr(vQa+4*L+s4)}, {vr(vT+1)}, {vr(vT+6)}")
    c("O staging write addrs: 12288w + q*384 + (((2*c2+hh) ^ (q&7))*16)")
    e(f"v_and_b32 {vr(vT+4)}, 7, {vr(vT+3)}")
    e(f"v_xor_b32 {vr(vT+4)}, {vr(vT+4)}, {vr(vT+2)}")
    e(f"v_lshlrev_b32 {vr(vT+4)}, 4, {vr(vT+4)}")
    e(f"v_lshl_add_u32 {vr(vT+6)}, {vr(vT+5)}, 7, {sr(sT1)}")
    for c2 in range(4):
        if c2 == 0:
            e(f"v_add_u32 {vr(vOw)}, {vr(vT+4)}, {vr(vT+6)}")
        elif c2 < 3:
            e(f"v_xad_u32 {vr(vOw+c2)}, {vr(vT+4)}, {32*c2}, {vr(vT+6)}")
        else:
            e(f"v_xor_b32 {vr(vT+1)}, 96, {vr(vT+4)}")
            e(f"v_add_u32 {vr(vOw+c2)}, {vr(vT+1)}, {vr(vT+6)}")
    c("O staging read addr: 12288w + (l>>3)*384 + (((l&7)^(l>>3))*16) ; global: 12288w + (l>>3)*384 + (l&7)*16")
    e(f"v_lshrrev_b32 {vr(vT)}, 3, {vr(vLane)}")
    e(f"v_and_b32 {vr(vT+4)}, 7, {vr(vLane)}")
    e(f"v_mul_u32_u24 {vr(vT+5)}, 384, {vr(vT)}")
    e(f"v_add_u32 {vr(vT+5)}, {sr(sT1)}, {vr(vT+5)}")
    e(f"v_lshl_add_u32 {vr(vOg)}, {vr(vT+4)}, 4, {vr(vT+5)}")
    e(f"v_xor_b32 {vr(vT+4)}, {vr(vT+4)}, {vr(vT)}")
    e(f"v_lshl_add_u32 {vr(vOr)}, {vr(vT+4)}, 4, {vr(vT+5)}")

    QPRE = opt.qpre

    def acc(rt, ct):
        return vAcc + (rt * 3 + ct) * 4

    def ef(ks, rt):
        return vEf + (ks * 2 + rt) * 4

    def kf(ct, ks):
        return vKf + (ct * 2 + ks) * 4

    def phase1(isV):
        issued = 5
        for t in range(8):
            c(f"---- tile {t}")
            allowed = (issued - (t + 1)) * 4
            e(f"s_waitcnt vmcnt({allowed})")
            e("s_barrier")
            if t == 0:
                stamp(1)
            if 1 <= t <= 3:
                issue_kv(t + 4)
                issued += 1
            elif t >= 4 and (t - 4) < QPRE and t <= 6:
                issue_q(t - 4)
                issued += 1
            if opt.flag == "ws" and t == 5:
                lab = f"L_NOCHK_{int(isV)}"
                e(f"s_cmp_lg_u32 {sr(sW)}, 0")
                e(f"s_cbranch_scc1 {lab}")
                e("s_mov_b64 exec, 1")
                e(f"buffer_load_dword {vr(vFl+1)}, {vr(vFl+2)}, {sr(S_D,4)}, 0 offen sc1")
                e("s_mov_b64 exec, -1")
                g.label(lab)
            p = phys(t)
            st, lo = p // 2, (p % 2) * 32768
            nrd = 0
            for ks in range(2):
                for rt in range(2):
                    e(f"ds_read_b128 {vr(ef(ks,rt),4)}, {vr(vEa+2*st+ks)} offset:{lo+24576+2048*rt}")
                for ct in range(3):
                    for hf in range(2):
                        e(f"ds_read_b64_tr_b16 {vr(kf(ct,ks)+2*hf,2)}, {vr(vKa+3*st+ct)} offset:{lo+12288*ks+1536*hf}")
            for ks in range(2):
                for ct in range(3):
                    done = ks * 8 + 2 + 2 * (ct + 1)
                    e(f"s_waitcnt lgkmcnt({16-done})")
                    for rt in range(2):
                        a = acc(rt, ct)
                        cin = "0" if (t == 0 and ks == 0) else vr(a, 4)
                        if isV:
                            e(f"v_mfma_f32_16x16x32_bf16 {vr(a,4)}, {vr(ef(ks,rt),4)}, {vr(kf(ct,ks),4)}, {cin}")
                        else:
                            e(f"v_mfma_f32_16x16x32_bf16 {vr(a,4)}, {vr(kf(ct,ks),4)}, {vr(ef(ks,rt),4)}, {cin}")
        stamp(2)
        c("---- epilogue: pack, swap, store partial")
        e(f"s_mul_i32 {sr(sT0)}, {sr(sSub)}, 24576")
        e(f"s_mul_i32 {sr(sT1)}, {sr(sCG)}, 3")
        e("s_nop 3")
        for ct in range(3):
            pk = vPk + 4 * ct
            if ct == 2:
                e("s_nop 1")
            e(f"v_cvt_pk_bf16_f32 {vr(pk)}, {vr(acc(0,ct))}, {vr(acc(0,ct)+1)}")
            e(f"v_cvt_pk_bf16_f32 {vr(pk+1)}, {vr(acc(0,ct)+2)}, {vr(acc(0,ct)+3)}")
            e(f"v_cvt_pk_bf16_f32 {vr(pk+2)}, {vr(acc(1,ct))}, {vr(acc(1,ct)+1)}")
            e(f"v_cvt_pk_bf16_f32 {vr(pk+3)}, {vr(acc(1,ct)+2)}, {vr(acc(1,ct)+3)}")
            e(f"s_add_u32 {sr(sT2)}, {sr(sT1)}, {ct}")
            if isV:
                e(f"s_lshr_b32 {sr(sT3)}, {sr(sT2)}, 1")
                e(f"s_lshl_b32 {sr(sT3)}, {sr(sT3)}, 12")
                e(f"s_and_b32 {sr(sT2)}, {sr(sT2)}, 1")
                e(f"s_lshl_b32 {sr(sT2)}, {sr(sT2)}, 8")
                e(f"s_add_u32 {sr(sT2)}, {sr(sT2)}, {sr(sT3)}")
            else:
                e(f"s_lshl_b32 {sr(sT2)}, {sr(sT2)}, 10")
            e(f"s_add_u32 {sr(sT2)}, {sr(sT2)}, {sr(sT0)}")
            op = "v_permlane32_swap_b32" if isV else "v_permlane16_swap_b32"
            e(f"{op} {vr(pk)}, {vr(pk+2)}")
            e(f"{op} {vr(pk+1)}, {vr(pk+3)}")
            e("s_nop 0")
            e(f"buffer_store_dwordx4 {vr(pk,4)}, {vr(vPo)}, {sr(S_P,4)}, {sr(sT2)} offen sc1")

    if opt.flag == "ws":
        e(f"s_lshl_b32 {sr(sT1)}, {sr(sH)}, 2")
        e(f"s_add_u32 {sr(sT1)}, {sr(sT1)}, 128")
        e(f"v_mov_b32 {vr(vFl+2)}, {sr(sT1)}")
        e(f"s_or_b32 {sr(sT1)}, {sr(sSub)}, {sr(sW)}")
        e(f"s_cmp_lg_u32 {sr(sT1)}, 0")
        e("s_cbranch_scc1 L_NOSIG")
        e("s_waitcnt vmcnt(20)")
        e("s_mov_b64 exec, 1")
        e(f"v_mov_b32 {vr(vT+2)}, 1")
        e(f"buffer_store_dword {vr(vT+2)}, {vr(vFl+2)}, {sr(S_D,4)}, 0 offen sc1")
        e("s_mov_b64 exec, -1")
        g.label("L_NOSIG")
    e(f"s_cmp_eq_u32 {sr(sT)}, 0")
    e("s_cbranch_scc0 L_P1_V")
    phase1(False)
    e("s_branch L_P1_DONE")
    g.label("L_P1_V")
    phase1(True)
    g.label("L_P1_DONE")

    nq_after = 3 - QPRE
    if opt.qafter == "before_flag":
        for j in range(QPRE, 3):
            issue_q(j)
        e(f"s_waitcnt vmcnt({4*nq_after})")
    else:
        e("s_waitcnt vmcnt(0)")
    e("s_barrier")
    stamp(3)

    e(f"s_cmp_lg_u32 {sr(sW)}, 0")
    e("s_cbranch_scc1 L_POLL_SKIP")
    if opt.flag == "ws":
        e(f"s_mov_b32 {sr(sCnt)}, 0")
        g.label("L_CHK")
        e(f"v_readfirstlane_b32 {sr(sT0)}, {vr(vFl+1)}")
        e(f"s_cmp_eq_u32 {sr(sT0)}, 1")
        e("s_cbranch_scc1 L_CHK_OK")
        e(f"s_add_u32 {sr(sCnt)}, {sr(sCnt)}, 1")
        e(f"s_cmp_gt_u32 {sr(sCnt)}, 200000")
        e("s_cbranch_scc1 L_CHK_OK")
        e("s_sleep 4")
        e("s_mov_b64 exec, 1")
        e(f"buffer_load_dword {vr(vFl+1)}, {vr(vFl+2)}, {sr(S_D,4)}, 0 offen sc1")
        e("s_mov_b64 exec, -1")
        e("s_waitcnt vmcnt(0)")
        e("s_branch L_CHK")
        g.label("L_CHK_OK")
        e("s_mov_b64 exec, 1")
        e(f"s_lshl_b32 {sr(sT0)}, {sr(sSub)}, 2")
        e(f"v_mov_b32 {vr(vT)}, {sr(sT0)}")
        e(f"v_mov_b32 {vr(vT+1)}, 1")
        e(f"buffer_store_dword {vr(vT+1)}, {vr(vT)}, {sr(S_F,4)}, 0 offen sc1")
        e("s_mov_b64 exec, 0xff")
        e(f"s_mov_b32 {sr(sCnt)}, 0")
        g.label("L_POLL")
        e(f"buffer_load_dword {vr(vT+3)}, {vr(vFl)}, {sr(S_F,4)}, 0 offen sc1")
        e(f"s_add_u32 {sr(sCnt)}, {sr(sCnt)}, 1")
        e("s_waitcnt vmcnt(0)")
        e(f"v_cmp_eq_u32 vcc, 1, {vr(vT+3)}")
        e("s_nop 1")
        e("s_cmp_eq_u32 vcc_lo, 0xff")
        e("s_cbranch_scc1 L_POLL_DONE")
        e(f"s_cmp_gt_u32 {sr(sCnt)}, 200000")
        e("s_cbranch_scc1 L_POLL_DONE")
        e("s_sleep 1")
        e("s_branch L_POLL")
    else:
        raise SystemExit("only ws flags supported now")
    g.label("L_POLL_DONE")
    e("s_mov_b64 exec, -1")
    g.label("L_POLL_SKIP")
    if opt.qafter == "after_flag":
        for j in range(QPRE, 3):
            issue_q(j)
    e("s_barrier")
    stamp(4)

    vGd = 128
    vS = 76
    def gd(k, j):
        return vGd + (k * 4 + j) * 4
    for k in range(6):
        tt, kk = k // 3, k % 3
        for j in range(4):
            e(f"s_mov_b32 {sr(sT0)}, {(tt*4+j)*24576 + kk*8192}")
            e(f"buffer_load_dwordx4 {vr(gd(k,j),4)}, {vr(vG)}, {sr(S_P,4)}, {sr(sT0)} offen sc1")

    def gsum(k, tmp):
        e(f"s_waitcnt vmcnt({24-4*(k+1)})")
        for j in range(4):
            for d in range(4):
                for hl in range(2):
                    a = tmp + 2 * d + hl
                    cin = "0" if j == 0 else vr(a)
                    e(f"v_dot2_f32_bf16 {vr(a)}, {vr(gd(k,j)+d)}, {sr(sHI if hl else sLO)}, {cin}")
        e("s_nop 2")
        for d in range(4):
            e(f"v_cvt_pk_bf16_f32 {vr(tmp+8+d)}, {vr(tmp+2*d)}, {vr(tmp+2*d+1)}")
        e(f"ds_write_b128 {vr(vGw)}, {vr(tmp+8,4)} offset:{8192*k}")

    for k in range(3):
        gsum(k, vS + 12 * k)
    e("s_waitcnt lgkmcnt(0)")
    e("s_barrier")
    stamp(5)

    vQf = 52
    vKP = 100
    vSa = 128
    vPf = 160
    NS = 6
    for s in range(12):
        e(f"ds_read_b128 {vr(vQf+4*s,4)}, {vr(vQa+s)}")
    seq = [(s, rt) for s in range(12) for rt in range(2)]
    def kp_read(n):
        s, rt = seq[n]
        e(f"ds_read_b128 {vr(vKP+4*(n%NS),4)}, {vr(vFr)} offset:{(rt*12+s)*1024}")
    for n in range(NS):
        kp_read(n)
    issued = NS
    for n in range(24):
        s, rt = seq[n]
        e(f"s_waitcnt lgkmcnt({min(15, issued-(n+1))})")
        a = vSa + 16 * rt
        cin = "0" if s == 0 else vr(a, 16)
        e(f"v_mfma_f32_32x32x16_bf16 {vr(a,16)}, {vr(vKP+4*(n%NS),4)}, {vr(vQf+4*s,4)}, {cin}")
        if issued < 24:
            kp_read(issued)
            issued += 1
    stamp(6)
    c("V gather sums")
    for k in range(3, 6):
        gsum(k, 224 + 0 if False else (52 + 12 * (k - 3)))
    stamp(7)
    c("softmax")
    vM, vM2, vSum, vSum2 = 88, 89, 90, 91
    e(f"v_max3_f32 {vr(vM)}, {vr(vSa)}, {vr(vSa+1)}, {vr(vSa+2)}")
    e(f"v_max3_f32 {vr(vM2)}, {vr(vSa+3)}, {vr(vSa+4)}, {vr(vSa+5)}")
    for i in range(6, 30, 4):
        e(f"v_max3_f32 {vr(vM)}, {vr(vM)}, {vr(vSa+i)}, {vr(vSa+i+1)}")
        e(f"v_max3_f32 {vr(vM2)}, {vr(vM2)}, {vr(vSa+i+2)}, {vr(vSa+i+3)}")
    e(f"v_max3_f32 {vr(vM)}, {vr(vM)}, {vr(vSa+30)}, {vr(vSa+31)}")
    e(f"v_max_f32 {vr(vM)}, {vr(vM)}, {vr(vM2)}")
    e(f"v_mov_b32 {vr(vM2)}, {vr(vM)}")
    e("s_nop 1")
    e(f"v_permlane32_swap_b32 {vr(vM)}, {vr(vM2)}")
    e("s_nop 1")
    e(f"v_max_f32 {vr(vM)}, {vr(vM)}, {vr(vM2)}")
    e(f"v_mul_f32 {vr(vM)}, {sr(sC)}, {vr(vM)}")
    for i in range(32):
        e(f"v_fma_f32 {vr(vSa+i)}, {vr(vSa+i)}, {sr(sC)}, -{vr(vM)}")
    for i in range(32):
        e(f"v_exp_f32 {vr(vSa+i)}, {vr(vSa+i)}")
    e("s_nop 0")
    e(f"v_add_f32 {vr(vSum)}, {vr(vSa)}, {vr(vSa+1)}")
    e(f"v_add_f32 {vr(vSum2)}, {vr(vSa+2)}, {vr(vSa+3)}")
    for i in range(4, 32, 2):
        e(f"v_add_f32 {vr(vSum)}, {vr(vSum)}, {vr(vSa+i)}")
        e(f"v_add_f32 {vr(vSum2)}, {vr(vSum2)}, {vr(vSa+i+1)}")
    e(f"v_add_f32 {vr(vSum)}, {vr(vSum)}, {vr(vSum2)}")
    e(f"v_mov_b32 {vr(vSum2)}, {vr(vSum)}")
    e("s_nop 1")
    e(f"v_permlane32_swap_b32 {vr(vSum)}, {vr(vSum2)}")
    e("s_nop 1")
    e(f"v_add_f32 {vr(vSum)}, {vr(vSum)}, {vr(vSum2)}")
    e(f"v_rcp_f32 {vr(vSum)}, {vr(vSum)}")
    e("s_nop 0")
    for i in range(32):
        e(f"v_mul_f32 {vr(vSa+i)}, {vr(vSa+i)}, {vr(vSum)}")
    for i in range(16):
        e(f"v_cvt_pk_bf16_f32 {vr(vPf+i)}, {vr(vSa+2*i)}, {vr(vSa+2*i+1)}")
    e("s_waitcnt lgkmcnt(0)")
    stamp(8)
    e("s_barrier")
    stamp(9)

    vVP = 100
    vOa = 128
    vOp = 52
    vOs = 208
    seq = [(jp, s, jj) for jp in range(3) for s in range(4) for jj in range(2)]
    VPB = 24576
    def vp_read(n):
        jp, s, jj = seq[n]
        e(f"ds_read_b128 {vr(vVP+4*(n%NS),4)}, {vr(vFr)} offset:{VPB+((2*jp+jj)*4+s)*1024}")
    stp = opt.stpol
    for n in range(NS):
        vp_read(n)
    issued = NS
    pend = []
    for n in range(NS):
        pend.append(('vp', n))

    def wait_for(tag):
        idx = pend.index(tag)
        after = len(pend) - idx - 1
        e(f"s_waitcnt lgkmcnt({min(15, after)})")
        del pend[:idx + 1]

    def epilogue(jp):
        ob = vOa if jp % 2 == 0 else 176
        for jj in range(2):
            a = ob + 16 * jj
            for a2 in range(2):
                pk = vOp + (jj * 2 + a2) * 4
                for d in range(4):
                    e(f"v_cvt_pk_bf16_f32 {vr(pk+d)}, {vr(a+8*a2+2*d)}, {vr(a+8*a2+2*d+1)}")
                e(f"ds_write_b128 {vr(vOw+2*jj+a2)}, {vr(pk,4)} offset:{128*jp}")
                pend.append(('w', jp, jj, a2))
        for i in range(4):
            e(f"ds_read_b128 {vr(vOs+16*jp+4*i,4)}, {vr(vOr)} offset:{128*jp+3072*i}")
            pend.append(('r', jp, i))

    def stores(jp):
        for i in range(4):
            if ('r', jp, i) in pend:
                wait_for(('r', jp, i))
            e(f"buffer_store_dwordx4 {vr(vOs+16*jp+4*i,4)}, {vr(vOg)}, {sr(S_O,4)}, {sr(sI+i)} offen offset:{128*jp} {stp}")

    for n in range(24):
        jp, s, jj = seq[n]
        if ('vp', n) in pend:
            wait_for(('vp', n))
        ob = vOa if jp % 2 == 0 else 176
        a = ob + 16 * jj
        cin = "0" if s == 0 else vr(a, 16)
        e(f"v_mfma_f32_32x32x16_bf16 {vr(a,16)}, {vr(vVP+4*(n%NS),4)}, {vr(vPf+4*s,4)}, {cin}")
        if issued < 24:
            vp_read(issued)
            pend.append(('vp', issued))
            issued += 1
        if n % 8 == 1 and jp >= 1:
            e("s_nop 7")
            e("s_nop 1")
            epilogue(jp - 1)
        if n % 8 == 5 and jp >= 1:
            stores(jp - 1)
    e("s_nop 7")
    e("s_nop 3")
    epilogue(2)
    stores(2)
    stamp(10)
    if TS:
        e("s_waitcnt vmcnt(0)")
        stamp(11)
        e("s_waitcnt lgkmcnt(0)")
        e(f"s_cmp_lg_u32 {sr(sW)}, 0")
        e("s_cbranch_scc1 L_END")
        if TS == 2:
            e("s_mov_b64 exec, 1")
            e(f"v_mov_b32 {vr(vT)}, 0")
            slots = [(0,1),(0,0),(1,0),(2,0),(3,0),(4,0),(5,0),(9,0),(10,0),(11,0),(1,1),(2,1),(3,1),(4,1),(5,1),(11,1)]
            for i,(st_,neg) in enumerate(slots):
                if neg:
                    e(f"s_not_b32 s3, {sr(sTS+2*st_)}")
                else:
                    e(f"s_mov_b32 s3, {sr(sTS+2*st_)}")
                e(f"v_mov_b32 {vr(vT+1)}, s3")
                e(f"buffer_atomic_umax {vr(vT+1)}, {vr(vT)}, {sr(S_D,4)}, 0 offen offset:{4*i} sc1")
                e("s_nop 1")
            e("s_branch L_END")
        e(f"s_add_u32 {sr(S_P)}, s18, 0x1000000")
        e(f"s_addc_u32 {sr(S_P+1)}, s19, 0")
        e(f"s_mov_b32 {sr(S_P+2)}, 0x10000")
        e("s_mov_b64 exec, 1")
        e("s_lshl_b32 s3, s2, 7")
        e(f"v_mov_b32 {vr(vT)}, s3")
        e(f"s_getreg_b32 {sr(sTS+24)}, hwreg(HW_REG_XCC_ID)")
        e(f"s_mov_b32 {sr(sTS+25)}, {sr(sCnt)}")
        for i in range(13):
            e(f"v_mov_b32 {vr(vT+1)}, {sr(sTS+2*i)}")
            e(f"v_mov_b32 {vr(vT+2)}, {sr(sTS+2*i+1)}")
            e(f"buffer_store_dwordx2 {vr(vT+1,2)}, {vr(vT)}, {sr(S_P,4)}, 0 offen offset:{8*i}")
            e("s_nop 1")
    g.label("L_END")
    e("s_endpgm")

    out = HEADER.format(n=NAME) + "\n".join(g.lines) + FOOTER.format(n=NAME, vgpr=256, acc=256)
    return out


if __name__ == "__main__":
    ap = argparse.ArgumentParser()
    ap.add_argument("-o", default=f"cdna_kernels/{NAME}.s")
    ap.add_argument("--ts", type=int, default=0)
    ap.add_argument("--qpre", type=int, default=1)
    ap.add_argument("--qafter", default="before_flag")
    ap.add_argument("--flag", default="ws")
    ap.add_argument("--stpol", default="sc1")
    opt = ap.parse_args()
    open(opt.o, "w").write(gen(opt))
```

```python
import sys, math, argparse, struct

NAME = "standalone__low_rank_proj_linformer__prompt"

HEADER = """; Kernarg layout for this problem (64 bytes, ptrs only, base s[0:1]):
; @launch grid=(256,1,1) block=(512,1,1) lds=163840
.amdgcn_target "amdgcn-amd-amdhsa--gfx950"
.text
.globl {n}_kernel
.p2align 8
.type {n}_kernel,@function
{n}_kernel:
"""

FOOTER = """
.section .rodata,"a"
.p2align 6
.amdhsa_kernel {n}_kernel
  .amdhsa_next_free_vgpr {vgpr}
  .amdhsa_next_free_sgpr 102
  .amdhsa_accum_offset {acc}
  .amdhsa_group_segment_fixed_size 0
  .amdhsa_kernarg_size 64
  .amdhsa_user_sgpr_count 2
  .amdhsa_user_sgpr_kernarg_segment_ptr 1
  .amdhsa_system_sgpr_workgroup_id_x 1
.end_amdhsa_kernel
"""


class G:
    def __init__(self):
        self.lines = []

    def e(self, s):
        self.lines.append("    " + s)

    def c(self, s):
        self.lines.append("    ; " + s)

    def label(self, s):
        self.lines.append(s + ":")


def vr(a, n=1):
    return f"v{a}" if n == 1 else f"v[{a}:{a+n-1}]"


def sr(a, n=1):
    return f"s{a}" if n == 1 else f"s[{a}:{a+n-1}]"


def gen(opt):
    g = G()
    e, c = g.e, g.c
    TS = opt.ts
    SPIN = 400000

    S_KV, S_E, S_Q, S_O, S_P, S_D = 20, 24, 28, 32, 36, 40
    sW, sH, sSub, sT, sQt = 44, 45, 46, 47, 48
    sT0, sT1, sT2, sT3 = 49, 50, 51, 52
    sRH, sCG = 53, 54
    sLO, sHI = 55, 56
    sC = 57
    sI = 58
    sM0K, sM0E = 62, 63
    sCnt = 64
    sCnt2 = 65
    sTS = 66
    S_F = 96
    sPo = 4
    sIss, sNew, sMask, sRep, sFail, sDone, sSet, sPh, sSh, sRpl = 7, 8, 9, 10, 11, 12, 13, 14, 15, 92
    sSav = 94

    vLane = 1
    vK = 2
    vE = 5
    vQd = 6
    vEa = 8
    vKa = 12
    vPo = 18
    vFl = 19
    vSy = 22
    vG = 23
    vGw = 24
    vT = 25
    vQa = 32
    vOw = 44
    vOr = 48
    vOg = 49
    vFr = 50
    vAcc = 52
    vEf = 76
    vKf = 92
    vPk = 116

    IMG = 98304
    SYNC = 147456

    def stamp(i):
        if TS:
            e(f"s_memrealtime {sr(sTS+2*i,2)}")

    e("s_cmp_ge_u32 s2, 256")
    e("s_cbranch_scc1 L_END")
    stamp(0)
    e("s_load_dwordx16 s[4:19], s[0:1], 0")
    e(f"v_and_b32 {vr(vLane)}, 63, v0")
    e(f"v_lshrrev_b32 {vr(vT)}, 6, v0")
    e(f"s_and_b32 {sr(sH)}, s2, 31")
    e(f"v_readfirstlane_b32 {sr(sW)}, {vr(vT)}")
    e(f"s_lshr_b32 {sr(sSub)}, s2, 5")
    e(f"s_lshr_b32 {sr(sT)}, {sr(sSub)}, 2")
    e(f"s_and_b32 {sr(sQt)}, {sr(sSub)}, 3")
    e(f"s_and_b32 {sr(sRH)}, {sr(sW)}, 1")
    e(f"s_lshr_b32 {sr(sCG)}, {sr(sW)}, 1")
    e(f"v_lshrrev_b32 {vr(vT)}, 3, {vr(vLane)}")
    e(f"v_lshlrev_b32 {vr(vT+1)}, 4, {vr(vLane)}")
    e(f"s_mul_i32 {sr(sM0K)}, {sr(sW)}, 3072")
    e(f"s_lshl_b32 {sr(sT0)}, {sr(sRH)}, 6")
    e(f"v_xor_b32 {vr(vT+1)}, {sr(sT0)}, {vr(vT+1)}")
    for i in range(3):
        e(f"v_add_u32 {vr(vT+2)}, {8*i}, {vr(vT)}")
        e(f"v_mul_u32_u24 {vr(vT+2)}, 11, {vr(vT+2)}")
        e(f"v_bfe_u32 {vr(vT+2)}, {vr(vT+2)}, 6, 1")
        e(f"v_lshlrev_b32 {vr(vT+2)}, 5, {vr(vT+2)}")
        e(f"v_xad_u32 {vr(vK+i)}, {vr(vT+1)}, {vr(vT+2)}, {sr(sM0K)}")
    e(f"s_lshl_b32 {sr(sT0)}, {sr(sW)}, 3")
    e(f"v_add_u32 {vr(vT+2)}, {sr(sT0)}, {vr(vT)}")
    e(f"v_bfe_u32 {vr(vT+3)}, {vr(vT+2)}, 1, 3")
    e(f"v_and_b32 {vr(vT+4)}, 7, {vr(vLane)}")
    e(f"v_xor_b32 {vr(vT+3)}, {vr(vT+3)}, {vr(vT+4)}")
    e(f"v_lshlrev_b32 {vr(vT+3)}, 4, {vr(vT+3)}")
    e(f"v_lshl_add_u32 {vr(vE)}, {vr(vT+2)}, 12, {vr(vT+3)}")
    e(f"s_lshl_b32 {sr(sM0E)}, {sr(sW)}, 10")
    e(f"s_add_u32 {sr(sM0E)}, {sr(sM0E)}, 24576")
    e(f"s_mul_i32 {sr(sT0)}, {sr(sH)}, 786432")
    e(f"s_mul_i32 {sr(sT1)}, {sr(sQt)}, 196608")
    e(f"s_add_u32 {sr(sT1)}, {sr(sT1)}, {sr(sT0)}")
    e(f"s_lshl_b32 {sr(sT2)}, {sr(sQt)}, 10")
    e(f"s_cmp_eq_u32 {sr(sT)}, 0")
    e("s_waitcnt lgkmcnt(0)")
    e(f"s_cselect_b32 {sr(S_KV)}, s6, s8")
    e(f"s_cselect_b32 {sr(S_KV+1)}, s7, s9")
    e(f"s_cselect_b32 {sr(S_E)}, s10, s12")
    e(f"s_cselect_b32 {sr(S_E+1)}, s11, s13")
    e(f"s_add_u32 {sr(S_KV)}, {sr(S_KV)}, {sr(sT1)}")
    e(f"s_addc_u32 {sr(S_KV+1)}, {sr(S_KV+1)}, 0")
    e(f"s_mov_b32 {sr(S_KV+2)}, 196608")
    e(f"s_mov_b32 {sr(S_KV+3)}, 0x00020000")
    e(f"s_add_u32 {sr(S_E)}, {sr(S_E)}, {sr(sT2)}")
    e(f"s_addc_u32 {sr(S_E+1)}, {sr(S_E+1)}, 0")
    e(f"s_sub_u32 {sr(S_E+2)}, 262144, {sr(sT2)}")
    e(f"s_mov_b32 {sr(S_E+3)}, 0x00020000")

    NST = 4

    def phys(t):
        return t % NST

    def issue_kv(t):
        pb = 32768 * phys(t)
        e(f"s_add_u32 m0, {sr(sM0K)}, {pb}")
        e(f"s_mov_b32 {sr(sT3)}, {24576*t}")
        for i in range(3):
            e(f"buffer_load_dwordx4 {vr(vK+i)}, {sr(S_KV,4)}, {sr(sT3)} offen offset:{1024*i} nt lds")
        e(f"s_add_u32 m0, {sr(sM0E)}, {pb}")
        e(f"s_mov_b32 {sr(sT3)}, {128*t}")
        e(f"buffer_load_dwordx4 {vr(vE)}, {sr(S_E,4)}, {sr(sT3)} offen lds")

    def issue_q_all(j):
        e(f"s_lshl_b32 {sr(sT3)}, {sr(sW)}, 12")
        e(f"s_add_u32 {sr(sT3)}, {sr(sT3)}, {32768*j}")
        e(f"s_mov_b32 m0, {sr(sT3)}")
        e("s_nop 0")
        for i in range(4):
            e(f"buffer_load_dwordx4 {vr(vQd+(i&1))}, {sr(S_Q,4)}, {sr(sT3)} offen offset:{1024*i} nt lds")

    SENT = opt.sent
    vq = []

    def issue_kv_q(t):
        issue_kv(t)
        vq.extend([('kv', t)] * 4)

    issue_kv_q(0)
    e(f"v_lshlrev_b32 {vr(vFl)}, 2, {vr(vLane)}")
    e(f"v_mov_b32 {vr(vT+2)}, 0")
    e(f"v_mov_b32 {vr(vSy)}, {SYNC}")
    if not SENT:
        e(f"s_mul_i32 {sr(sT1)}, {sr(sH)}, 4352")
        e(f"s_add_u32 {sr(sT1)}, {sr(sT1)}, 0x800000")
        e(f"s_add_u32 {sr(S_F)}, s18, {sr(sT1)}")
        e(f"s_addc_u32 {sr(S_F+1)}, s19, 0")
        e(f"s_mov_b32 {sr(S_F+2)}, 32")
        e(f"s_mov_b32 {sr(S_F+3)}, 0x00020000")
        e(f"s_xor_b32 {sr(sT1)}, {sr(sW)}, 7")
        e(f"s_or_b32 {sr(sT1)}, {sr(sT1)}, {sr(sSub)}")
        e(f"s_cmp_lg_u32 {sr(sT1)}, 0")
        e("s_cbranch_scc1 L_NOCLR")
        e(f"buffer_store_dword {vr(vT+2)}, {vr(vFl)}, {sr(S_F,4)}, 0 offen sc1")
        g.label("L_NOCLR")
    e(f"v_add_u32 {vr(vT+3)}, {SYNC}, {vr(vFl)}")
    e(f"ds_write_b32 {vr(vT+3)}, {vr(vT+2)}")
    for t in range(1, NST):
        if opt.pbar:
            e("s_barrier")
        issue_kv_q(t)

    c("remaining SRDs")
    e(f"s_mul_i32 {sr(sT1)}, {sr(sSub)}, 98304")
    e(f"s_add_u32 {sr(sT1)}, {sr(sT1)}, {sr(sT0)}")
    e(f"s_add_u32 {sr(S_Q)}, s4, {sr(sT1)}")
    e(f"s_addc_u32 {sr(S_Q+1)}, s5, 0")
    e(f"s_mov_b32 {sr(S_Q+2)}, 98304")
    e(f"s_mov_b32 {sr(S_Q+3)}, 0x00020000")
    e(f"s_add_u32 {sr(S_O)}, s14, {sr(sT1)}")
    e(f"s_addc_u32 {sr(S_O+1)}, s15, 0")
    e(f"s_mov_b32 {sr(S_O+2)}, 98304")
    e(f"s_mov_b32 {sr(S_O+3)}, 0x00020000")
    e(f"s_mul_i32 {sr(sT1)}, {sr(sH)}, 196608")
    e(f"s_add_u32 {sr(S_P)}, s18, {sr(sT1)}")
    e(f"s_addc_u32 {sr(S_P+1)}, s19, 0")
    e(f"s_mov_b32 {sr(S_P+2)}, 196608")
    e(f"s_mov_b32 {sr(S_P+3)}, 0x00020000")
    e(f"s_mov_b32 {sr(S_D)}, s16")
    e(f"s_mov_b32 {sr(S_D+1)}, s17")
    e(f"s_mov_b32 {sr(S_D+2)}, 256")
    e(f"s_mov_b32 {sr(S_D+3)}, 0x00020000")
    e(f"s_mov_b32 {sr(sLO)}, 0x00003f80")
    e(f"s_mov_b32 {sr(sHI)}, 0x3f800000")
    cst = math.log2(math.e) / math.sqrt(192.0)
    e(f"s_mov_b32 {sr(sC)}, 0x{struct.unpack('<I', struct.pack('<f', cst))[0]:08x}")
    for i in range(4):
        e(f"s_mov_b32 {sr(sI+i)}, {3072*i}")

    c("Q DMA patterns")
    e(f"v_lshrrev_b32 {vr(vT+2)}, 4, {vr(vLane)}")
    e(f"v_xor_b32 {vr(vT+3)}, {vr(vT+2)}, {vr(vT+4)}")
    e(f"v_lshlrev_b32 {vr(vT+3)}, 4, {vr(vT+3)}")
    e(f"v_lshl_add_u32 {vr(vQd)}, {vr(vT)}, 7, {vr(vT+3)}")
    e(f"v_xor_b32 {vr(vQd+1)}, 64, {vr(vQd)}")

    c("E frag addrs")
    e(f"v_and_b32 {vr(vT+3)}, 15, {vr(vLane)}")
    e(f"v_lshrrev_b32 {vr(vT+5)}, 1, {vr(vT+3)}")
    e(f"v_xor_b32 {vr(vT+5)}, {vr(vT+5)}, {vr(vT+2)}")
    e(f"v_lshlrev_b32 {vr(vT+5)}, 4, {vr(vT+5)}")
    e(f"v_lshl_add_u32 {vr(vT+5)}, {vr(vT+3)}, 7, {vr(vT+5)}")
    e(f"s_lshl_b32 {sr(sT1)}, {sr(sRH)}, 12")
    e(f"v_add_u32 {vr(vEa)}, {sr(sT1)}, {vr(vT+5)}")
    e(f"v_xor_b32 {vr(vEa+1)}, 64, {vr(vEa)}")
    e(f"v_add_u32 {vr(vEa+2)}, 65536, {vr(vEa)}")
    e(f"v_add_u32 {vr(vEa+3)}, 65536, {vr(vEa+1)}")

    c("K frag addrs")
    e(f"v_bfe_u32 {vr(vT+5)}, {vr(vLane)}, 2, 2")
    e(f"v_lshl_add_u32 {vr(vT+5)}, {vr(vT+2)}, 3, {vr(vT+5)}")
    e(f"v_mul_u32_u24 {vr(vT+5)}, 384, {vr(vT+5)}")
    e(f"v_and_b32 {vr(vT+6)}, 3, {vr(vLane)}")
    e(f"v_lshl_add_u32 {vr(vT+5)}, {vr(vT+6)}, 3, {vr(vT+5)}")
    e(f"v_bfe_u32 {vr(vT+6)}, {vr(vLane)}, 3, 2")
    e(f"v_lshlrev_b32 {vr(vT+6)}, 5, {vr(vT+6)}")
    e(f"s_mul_i32 {sr(sT1)}, {sr(sCG)}, 96")
    for ct in range(3):
        e(f"s_add_u32 {sr(sT2)}, {sr(sT1)}, {32*ct}")
        e(f"v_xad_u32 {vr(vKa+ct)}, {vr(vT+6)}, {sr(sT2)}, {vr(vT+5)}")
    for ct in range(3):
        e(f"v_add_u32 {vr(vKa+3+ct)}, 65536, {vr(vKa+ct)}")

    c("partial store voffset")
    e(f"s_mul_i32 {sr(sT1)}, {sr(sRH)}, 12288")
    e(f"v_lshlrev_b32 {vr(vT+5)}, 4, {vr(vLane)}")
    e(f"v_add_u32 {vr(vPo)}, {sr(sT1)}, {vr(vT+5)}")
    e(f"s_cmp_eq_u32 {sr(sT)}, 0")
    e("s_cbranch_scc1 L_PO_DONE")
    e(f"v_and_b32 {vr(vT+5)}, 3, {vr(vLane)}")
    e(f"v_bfe_u32 {vr(vT+6)}, {vr(vLane)}, 2, 1")
    e(f"v_lshl_or_b32 {vr(vT+5)}, {vr(vT+6)}, 3, {vr(vT+5)}")
    e(f"v_bfe_u32 {vr(vT+6)}, {vr(vLane)}, 3, 1")
    e(f"v_lshl_or_b32 {vr(vT+5)}, {vr(vT+6)}, 2, {vr(vT+5)}")
    e(f"v_bfe_u32 {vr(vT+6)}, {vr(vLane)}, 4, 1")
    e(f"v_lshl_or_b32 {vr(vT+5)}, {vr(vT+6)}, 5, {vr(vT+5)}")
    e(f"v_lshlrev_b32 {vr(vT+5)}, 4, {vr(vT+5)}")
    e(f"v_lshrrev_b32 {vr(vT+6)}, 5, {vr(vLane)}")
    e(f"v_lshl_add_u32 {vr(vT+5)}, {vr(vT+6)}, 10, {vr(vT+5)}")
    e(f"s_lshl_b32 {sr(sT1)}, {sr(sRH)}, 11")
    e(f"v_add_u32 {vr(vPo)}, {sr(sT1)}, {vr(vT+5)}")
    g.label("L_PO_DONE")

    c("gather / frag addresses: K waves 0..2, V waves 5..7; 8 KiB contiguous per wave")
    e(f"s_lshl_b32 {sr(sT1)}, {sr(sW)}, 13")
    e(f"s_sub_u32 {sr(sT2)}, {sr(sT1)}, 16384")
    e(f"s_add_u32 {sr(sT3)}, {sr(sT1)}, {98304-40960}")
    e(f"s_cmp_lt_u32 {sr(sW)}, 4")
    e(f"s_cselect_b32 {sr(sT2)}, {sr(sT1)}, {sr(sT2)}")
    e(f"s_cselect_b32 {sr(sT3)}, {sr(sT1)}, {sr(sT3)}")
    e(f"v_lshlrev_b32 {vr(vFr)}, 4, {vr(vLane)}")
    e(f"v_add_u32 {vr(vG)}, {sr(sT3)}, {vr(vFr)}")
    e(f"v_add_u32 {vr(vFr)}, {IMG}, {vr(vFr)}")
    e(f"v_add_u32 {vr(vGw)}, {sr(sT2)}, {vr(vFr)}")

    c("Q frag addrs")
    e(f"s_mul_i32 {sr(sT1)}, {sr(sW)}, 12288")
    e(f"v_and_b32 {vr(vT+3)}, 31, {vr(vLane)}")
    e(f"v_lshrrev_b32 {vr(vT+2)}, 5, {vr(vLane)}")
    e(f"v_mul_u32_u24 {vr(vT+5)}, 3, {vr(vT+3)}")
    for L in range(3):
        e(f"v_add_u32 {vr(vT+6)}, {L}, {vr(vT+5)}")
        e(f"v_bfe_u32 {vr(vT+4)}, {vr(vT+6)}, 1, 3")
        e(f"v_xor_b32 {vr(vT+4)}, {vr(vT+4)}, {vr(vT+2)}")
        e(f"v_lshlrev_b32 {vr(vT+4)}, 4, {vr(vT+4)}")
        e(f"v_lshl_add_u32 {vr(vT+6)}, {vr(vT+6)}, 7, {sr(sT1)}")
        for s4 in range(4):
            if s4 == 0:
                e(f"v_add_u32 {vr(vQa+4*L)}, {vr(vT+4)}, {vr(vT+6)}")
            elif s4 < 3:
                e(f"v_xad_u32 {vr(vQa+4*L+s4)}, {vr(vT+4)}, {32*s4}, {vr(vT+6)}")
            else:
                e(f"v_xor_b32 {vr(vT+1)}, 96, {vr(vT+4)}")
                e(f"v_add_u32 {vr(vQa+4*L+s4)}, {vr(vT+1)}, {vr(vT+6)}")
    c("O staging addrs")
    e(f"v_and_b32 {vr(vT+4)}, 7, {vr(vT+3)}")
    e(f"v_xor_b32 {vr(vT+4)}, {vr(vT+4)}, {vr(vT+2)}")
    e(f"v_lshlrev_b32 {vr(vT+4)}, 4, {vr(vT+4)}")
    e(f"v_lshl_add_u32 {vr(vT+6)}, {vr(vT+5)}, 7, {sr(sT1)}")
    for c2 in range(4):
        if c2 == 0:
            e(f"v_add_u32 {vr(vOw)}, {vr(vT+4)}, {vr(vT+6)}")
        elif c2 < 3:
            e(f"v_xad_u32 {vr(vOw+c2)}, {vr(vT+4)}, {32*c2}, {vr(vT+6)}")
        else:
            e(f"v_xor_b32 {vr(vT+1)}, 96, {vr(vT+4)}")
            e(f"v_add_u32 {vr(vOw+c2)}, {vr(vT+1)}, {vr(vT+6)}")
    e(f"v_lshrrev_b32 {vr(vT)}, 3, {vr(vLane)}")
    e(f"v_and_b32 {vr(vT+4)}, 7, {vr(vLane)}")
    e(f"v_mul_u32_u24 {vr(vT+5)}, 384, {vr(vT)}")
    e(f"v_add_u32 {vr(vT+5)}, {sr(sT1)}, {vr(vT+5)}")
    e(f"v_lshl_add_u32 {vr(vOg)}, {vr(vT+4)}, 4, {vr(vT+5)}")
    e(f"v_xor_b32 {vr(vT+4)}, {vr(vT+4)}, {vr(vT)}")
    e(f"v_lshl_add_u32 {vr(vOr)}, {vr(vT+4)}, 4, {vr(vT+5)}")

    def part_soff(ct, isV, dst):
        e(f"s_add_u32 {sr(dst)}, {sr(sT1)}, {ct}")
        if isV:
            e(f"s_lshr_b32 {sr(sT3)}, {sr(dst)}, 1")
            e(f"s_lshl_b32 {sr(sT3)}, {sr(sT3)}, 12")
            e(f"s_and_b32 {sr(dst)}, {sr(dst)}, 1")
            e(f"s_lshl_b32 {sr(dst)}, {sr(dst)}, 8")
            e(f"s_add_u32 {sr(dst)}, {sr(dst)}, {sr(sT3)}")
        else:
            e(f"s_lshl_b32 {sr(dst)}, {sr(dst)}, 10")
        e(f"s_add_u32 {sr(dst)}, {sr(dst)}, {sr(sT0)}")

    c("partial store soffsets -> sPo[0..2]")
    e(f"s_mul_i32 {sr(sT0)}, {sr(sSub)}, 24576")
    e(f"s_mul_i32 {sr(sT1)}, {sr(sCG)}, 3")
    e(f"s_cmp_eq_u32 {sr(sT)}, 0")
    e("s_cbranch_scc0 L_SO_V")
    for ct in range(3):
        part_soff(ct, False, sPo + ct)
    e("s_branch L_SO_DONE")
    g.label("L_SO_V")
    for ct in range(3):
        part_soff(ct, True, sPo + ct)
    g.label("L_SO_DONE")

    if SENT:
        c("sentinel prefill of this wave's partial slots")
        for i in range(4):
            e(f"v_mov_b32 {vr(vPk+i)}, -1")
        for ct in range(3):
            e(f"buffer_store_dwordx4 {vr(vPk,4)}, {vr(vPo)}, {sr(S_P,4)}, {sr(sPo+ct)} offen sc1")
            vq.append(('sent', ct))
        c("d_debug byte offset of this WG: h*8+sub ; of the head: h*8")
        e(f"s_lshl_b32 {sr(sT1)}, {sr(sH)}, 3")
        e(f"v_mov_b32 {vr(vFl+2)}, {sr(sT1)}")
        e(f"s_add_u32 {sr(sT1)}, {sr(sT1)}, {sr(sSub)}")
        e(f"v_mov_b32 {vr(vFl+1)}, {sr(sT1)}")
        c("hint addresses: lane = k*8 + j ; hint wave hw(k)")
        NH = opt.nh
        e(f"v_and_b32 {vr(vT+2)}, 7, {vr(vLane)}")
        e(f"v_lshrrev_b32 {vr(vT+3)}, 3, {vr(vLane)}")
        e(f"v_mul_u32_u24 {vr(vT+3)}, {8//NH}, {vr(vT+3)}")
        e(f"v_sub_u32 {vr(vT+3)}, 7, {vr(vT+3)}")
        e(f"v_and_b32 {vr(vT+3)}, 7, {vr(vT+3)}")
        e(f"v_lshrrev_b32 {vr(vT+4)}, 1, {vr(vT+3)}")
        e(f"v_mul_u32_u24 {vr(vT+4)}, 3, {vr(vT+4)}")
        e(f"v_add_u32 {vr(vT+4)}, 2, {vr(vT+4)}")
        e(f"v_and_b32 {vr(vT+3)}, 1, {vr(vT+3)}")
        e(f"v_mul_u32_u24 {vr(vT+5)}, 12288, {vr(vT+3)}")
        e(f"v_lshl_add_u32 {vr(vT+5)}, {vr(vT+4)}, 10, {vr(vT+5)}")
        e(f"v_add_u32 {vr(vT+5)}, 1020, {vr(vT+5)}")
        e(f"v_lshrrev_b32 {vr(vT+6)}, 1, {vr(vT+4)}")
        e(f"v_lshlrev_b32 {vr(vT+6)}, 12, {vr(vT+6)}")
        e(f"v_lshl_add_u32 {vr(vT+6)}, {vr(vT+3)}, 11, {vr(vT+6)}")
        e(f"v_and_b32 {vr(vT+4)}, 1, {vr(vT+4)}")
        e(f"v_lshl_add_u32 {vr(vT+6)}, {vr(vT+4)}, 8, {vr(vT+6)}")
        e(f"v_add_u32 {vr(vT+6)}, {752+1024+12}, {vr(vT+6)}")
        e(f"v_cmp_gt_u32 vcc, 4, {vr(vT+2)}")
        e(f"v_cndmask_b32 {vr(vT+5)}, {vr(vT+6)}, {vr(vT+5)}, vcc")
        e(f"v_mul_u32_u24 {vr(vT+2)}, 24576, {vr(vT+2)}")
        e(f"v_add_u32 {vr(vFl)}, {vr(vT+2)}, {vr(vT+5)}")
    else:
        c("leader signals 'cleared' in d_debug[32+h]")
        e(f"s_lshl_b32 {sr(sT1)}, {sr(sH)}, 2")
        e(f"s_add_u32 {sr(sT1)}, {sr(sT1)}, 128")
        e(f"v_mov_b32 {vr(vFl+2)}, {sr(sT1)}")
        e(f"s_xor_b32 {sr(sT1)}, {sr(sW)}, 7")
        e(f"s_or_b32 {sr(sT1)}, {sr(sT1)}, {sr(sSub)}")
        e(f"s_cmp_lg_u32 {sr(sT1)}, 0")
        e("s_cbranch_scc1 L_NOSIG")
        e(f"s_waitcnt vmcnt({4*(NST-1)})")
        e("s_mov_b64 exec, 1")
        e(f"v_mov_b32 {vr(vT+2)}, 1")
        e(f"buffer_store_dword {vr(vT+2)}, {vr(vFl+2)}, {sr(S_D,4)}, 0 offen sc1")
        e("s_mov_b64 exec, -1")
        g.label("L_NOSIG")
    e(f"v_mov_b32 {vr(vT+1)}, 1")
    e("s_waitcnt lgkmcnt(0)")

    QPRE = opt.qpre

    def acc(rt, ct):
        return vAcc + (rt * 3 + ct) * 4

    def ef(ks, rt):
        return vEf + (ks * 2 + rt) * 4

    def kf(ct, ks):
        return vKf + (ct * 2 + ks) * 4

    vRd = 128
    vGd = 56
    vGa = 184
    uid = [0]

    def newlab(p):
        uid[0] += 1
        return f"L_{p}_{uid[0]}"

    def phase1(isV):
        q = list(vq)
        for t in range(8):
            c(f"---- tile {t}")
            last = max(i for i, x in enumerate(q) if x == ('kv', t))
            allowed = len(q) - last - 1
            e(f"s_waitcnt vmcnt({allowed})")
            e("s_barrier")
            if t == 0:
                stamp(1)
            if t >= 1 and t + NST - 1 <= 7:
                issue_kv(t + NST - 1)
                q.extend([('kv', t + NST - 1)] * 4)
            elif t >= 5 and (t - 5) < QPRE:
                issue_q_all(t - 5)
                q.extend([('q', t - 5)] * 4)
            if SENT and t == 4:
                lab = newlab("NORDY")
                e(f"s_cmp_lg_u32 {sr(sW)}, 3")
                e(f"s_cbranch_scc1 {lab}")
                e("s_mov_b64 exec, 1")
                e(f"buffer_store_byte {vr(vT+1)}, {vr(vFl+1)}, {sr(S_D,4)}, 0 offen sc1")
                e("s_mov_b64 exec, -1")
                g.label(lab)
            if (SENT and t == 7) or (not SENT and t == 5):
                lab = newlab("NOCHK")
                e(f"s_cmp_lg_u32 {sr(sW)}, 3")
                e(f"s_cbranch_scc1 {lab}")
                e("s_mov_b64 exec, 1")
                if SENT:
                    e(f"buffer_load_dwordx2 {vr(vRd,2)}, {vr(vFl+2)}, {sr(S_D,4)}, 0 offen sc1")
                else:
                    e(f"buffer_load_dword {vr(vRd)}, {vr(vFl+2)}, {sr(S_D,4)}, 0 offen sc1")
                e("s_mov_b64 exec, -1")
                g.label(lab)
            p = phys(t)
            st, lo = p // 2, (p % 2) * 32768
            for ks in range(2):
                for rt in range(2):
                    e(f"ds_read_b128 {vr(ef(ks,rt),4)}, {vr(vEa+2*st+ks)} offset:{lo+24576+2048*rt}")
                for ct in range(3):
                    for hf in range(2):
                        e(f"ds_read_b64_tr_b16 {vr(kf(ct,ks)+2*hf,2)}, {vr(vKa+3*st+ct)} offset:{lo+12288*ks+1536*hf}")
            for ks in range(2):
                for ct in range(3):
                    done = ks * 8 + 2 + 2 * (ct + 1)
                    e(f"s_waitcnt lgkmcnt({16-done})")
                    for rt in range(2):
                        a = acc(rt, ct)
                        cin = "0" if (t == 0 and ks == 0) else vr(a, 4)
                        if isV:
                            e(f"v_mfma_f32_16x16x32_bf16 {vr(a,4)}, {vr(ef(ks,rt),4)}, {vr(kf(ct,ks),4)}, {cin}")
                        else:
                            e(f"v_mfma_f32_16x16x32_bf16 {vr(a,4)}, {vr(kf(ct,ks),4)}, {vr(ef(ks,rt),4)}, {cin}")
        stamp(2)
        c("---- epilogue: pack, swap, store partial")
        e("s_nop 4")
        for ct in range(3):
            pk = vPk + 4 * ct
            e(f"v_cvt_pk_bf16_f32 {vr(pk)}, {vr(acc(0,ct))}, {vr(acc(0,ct)+1)}")
            e(f"v_cvt_pk_bf16_f32 {vr(pk+1)}, {vr(acc(0,ct)+2)}, {vr(acc(0,ct)+3)}")
            e(f"v_cvt_pk_bf16_f32 {vr(pk+2)}, {vr(acc(1,ct))}, {vr(acc(1,ct)+1)}")
            e(f"v_cvt_pk_bf16_f32 {vr(pk+3)}, {vr(acc(1,ct)+2)}, {vr(acc(1,ct)+3)}")
            e("s_nop 1")
            op = "v_permlane32_swap_b32" if isV else "v_permlane16_swap_b32"
            e(f"{op} {vr(pk)}, {vr(pk+2)}")
            e(f"{op} {vr(pk+1)}, {vr(pk+3)}")
            e("s_nop 1")
            e(f"buffer_store_dwordx4 {vr(pk,4)}, {vr(vPo)}, {sr(S_P,4)}, {sr(sPo+ct)} offen sc1")

    c("zero gather accumulators")
    for i in range(64):
        e(f"v_mov_b32 {vr(vGa+i)}, 0")
    e(f"s_mov_b32 {sr(sRep)}, 0")
    e(f"s_mov_b32 {sr(sCnt)}, 0")
    e(f"s_cmp_eq_u32 {sr(sT)}, 0")
    e("s_cbranch_scc0 L_P1_V")
    phase1(False)
    e("s_branch L_P1_DONE")
    g.label("L_P1_V")
    phase1(True)
    g.label("L_P1_DONE")

    nqi = (3 - QPRE) * 32
    QE = min(opt.qearly, nqi)
    QD = min(opt.qdepth, 63)

    def q_instr(i):
        if i % 4 == 0:
            e(f"s_mov_b32 {sr(sT3)}, {1024*(32*QPRE + i)}")
            e(f"s_mov_b32 m0, {sr(sT3)}")
            e("s_nop 0")
        e(f"buffer_load_dwordx4 {vr(vQd+(i&1))}, {sr(S_Q,4)}, {sr(sT3)} offen offset:{1024*(i&3)} nt lds")

    def report():
        lab = newlab("REP")
        lab2 = newlab("REP")
        e(f"s_cmp_lg_u32 {sr(sRep)}, 0")
        e(f"s_cbranch_scc1 {lab}")
        e(f"s_mov_b32 {sr(sRep)}, 1")
        e(f"s_mov_b64 {sr(sSav,2)}, exec")
        e("s_mov_b64 exec, 1")
        e(f"ds_add_rtn_u32 {vr(vT+2)}, {vr(vSy)}, {vr(vT+1)} offset:8")
        e(f"v_mov_b32 {vr(vT)}, 3")
        e("s_waitcnt lgkmcnt(0)")
        e(f"v_readfirstlane_b32 {sr(sT0)}, {vr(vT+2)}")
        e(f"s_cmp_lg_u32 {sr(sT0)}, 7")
        e(f"s_cbranch_scc1 {lab2}")
        e(f"buffer_store_byte {vr(vT)}, {vr(vFl+1)}, {sr(S_D,4)}, 0 offen sc1")
        g.label(lab2)
        e(f"s_mov_b64 exec, {sr(sSav,2)}")
        g.label(lab)

    if SENT:
        e("s_waitcnt vmcnt(3)")
        stamp(3)
        e("s_mov_b64 exec, 1")
        e(f"ds_add_u32 {vr(vSy)}, {vr(vT+1)}")
        e("s_mov_b64 exec, -1")
        QE = 0
    else:
        e(f"s_cmp_lg_u32 {sr(sW)}, 4")
        e("s_cbranch_scc1 L_G_DRAIN")
        for i in range(QE):
            q_instr(i)
        e(f"s_waitcnt vmcnt({QE})")
        e("s_branch L_ARRIVE")
        g.label("L_G_DRAIN")
        e("s_waitcnt vmcnt(0)")
        e(f"s_cmp_lg_u32 {sr(sW)}, 3")
        e("s_cbranch_scc1 L_ARRIVE")
        c("poller wave: verify 'cleared' before arriving")
        g.label("L_CHK")
        e(f"v_readfirstlane_b32 {sr(sT0)}, {vr(vRd)}")
        e(f"s_cmp_eq_u32 {sr(sT0)}, 1")
        e("s_cbranch_scc1 L_ARRIVE")
        e(f"s_add_u32 {sr(sCnt)}, {sr(sCnt)}, 1")
        e(f"s_cmp_gt_u32 {sr(sCnt)}, {SPIN}")
        e("s_cbranch_scc1 L_ARRIVE")
        e("s_sleep 4")
        e("s_mov_b64 exec, 1")
        e(f"buffer_load_dword {vr(vRd)}, {vr(vFl+2)}, {sr(S_D,4)}, 0 offen sc1")
        e("s_mov_b64 exec, -1")
        e("s_waitcnt vmcnt(0)")
        e("s_branch L_CHK")
        g.label("L_ARRIVE")
        stamp(3)
        e("s_mov_b64 exec, 1")
        e(f"ds_add_rtn_u32 {vr(vT+2)}, {vr(vSy)}, {vr(vT+1)}")
        e(f"s_lshl_b32 {sr(sT0)}, {sr(sSub)}, 2")
        e(f"v_mov_b32 {vr(vT)}, {sr(sT0)}")
        e("s_waitcnt lgkmcnt(0)")
        e(f"v_readfirstlane_b32 {sr(sT0)}, {vr(vT+2)}")
        e(f"s_cmp_lg_u32 {sr(sT0)}, 7")
        e("s_cbranch_scc1 L_NOPUB")
        e(f"buffer_store_dword {vr(vT+1)}, {vr(vT)}, {sr(S_F,4)}, 0 offen sc1")
        g.label("L_NOPUB")
        e("s_mov_b64 exec, -1")
    e(f"s_mov_b32 {sr(sCnt)}, 0")
    e(f"s_cmp_eq_u32 {sr(sW)}, 3")
    e("s_cbranch_scc1 L_P_ROLE")
    e(f"s_cmp_lg_u32 {sr(sW)}, 4")
    e("s_cbranch_scc1 L_G_ROLE")

    c("Q loader")
    posted = [0]

    def post(kb):
        e(f"v_mov_b32 v2, {kb}")
        e(f"ds_write_b32 {vr(vSy)}, v2 offset:20")
        posted[0] = kb
    post(32 * QPRE)
    reported = False
    for i in range(QE, nqi):
        if i >= QD:
            e(f"s_waitcnt vmcnt({QD-1})")
            kb = 32 * QPRE + (i - QD + 1)
            if kb % 12 == 0:
                post(kb)
        q_instr(i)
    stamp(4)
    for kb in range(12, 97, 12):
        if kb > posted[0]:
            e(f"s_waitcnt vmcnt({min(63, 96 - kb)})")
            post(kb)
    stamp(5)
    stamp(6)
    if SENT:
        report()
    e("s_branch L_PHASE2")

    g.label("L_P_ROLE")
    e(f"s_mov_b32 {sr(sMask)}, 0")
    if not SENT:
        e("s_mov_b64 exec, 0xff")
        g.label("L_POLL")
        e(f"buffer_load_dword {vr(vRd+2)}, {vr(vFl)}, {sr(S_F,4)}, 0 offen sc1")
        e(f"s_add_u32 {sr(sCnt)}, {sr(sCnt)}, 1")
        e("s_waitcnt vmcnt(0)")
        e(f"v_cmp_eq_u32 vcc, 1, {vr(vRd+2)}")
        e(f"s_cmp_gt_u32 {sr(sCnt)}, {SPIN}")
        e(f"s_cselect_b32 {sr(sT0)}, 0xff, 0")
        e(f"s_or_b32 {sr(sT0)}, {sr(sT0)}, vcc_lo")
        e(f"s_cmp_eq_u32 {sr(sT0)}, {sr(sMask)}")
        e("s_cbranch_scc1 L_POLL_SAME")
        e(f"v_mov_b32 v2, {sr(sT0)}")
        e(f"ds_write_b32 {vr(vSy)}, v2 offset:4")
        if TS:
            e(f"s_cmp_lg_u32 {sr(sMask)}, 0")
            e("s_cbranch_scc1 L_POLL_NOTS")
            stamp(4)
            g.label("L_POLL_NOTS")
        e(f"s_mov_b32 {sr(sMask)}, {sr(sT0)}")
        e(f"s_cmp_eq_u32 {sr(sMask)}, 0xff")
        e("s_cbranch_scc1 L_POLL_DONE")
        g.label("L_POLL_SAME")
        if opt.psleep:
            e(f"s_sleep {opt.psleep}")
        e("s_branch L_POLL")
        g.label("L_POLL_DONE")
        e("s_mov_b64 exec, -1")
    else:
        NH = opt.nh
        E0 = (1 << (8 * NH)) - 1
        g.label("L_RDY")
        e(f"v_readfirstlane_b32 {sr(sT0)}, {vr(vRd)}")
        e(f"v_readfirstlane_b32 {sr(sT1)}, {vr(vRd+1)}")
        e(f"s_and_b32 {sr(sT0)}, {sr(sT0)}, {sr(sT1)}")
        e(f"s_and_b32 {sr(sT0)}, {sr(sT0)}, 0x01010101")
        e(f"s_cmp_eq_u32 {sr(sT0)}, 0x01010101")
        e("s_cbranch_scc1 L_RDY_DONE")
        e(f"s_add_u32 {sr(sCnt)}, {sr(sCnt)}, 1")
        e(f"s_cmp_gt_u32 {sr(sCnt)}, {SPIN}")
        e("s_cbranch_scc1 L_RDY_DONE")
        e("s_mov_b64 exec, 1")
        e(f"buffer_load_dwordx2 {vr(vRd,2)}, {vr(vFl+2)}, {sr(S_D,4)}, 0 offen sc1")
        e("s_mov_b64 exec, -1")
        e("s_waitcnt vmcnt(0)")
        report()
        e("s_sleep 2")
        e("s_branch L_RDY")
        g.label("L_RDY_DONE")
        e(f"s_mov_b32 {sr(sCnt)}, 0")
        e(f"s_mov_b32 {sr(sRpl)}, 0")
        e(f"s_mov_b32 exec_lo, 0x{E0 & 0xffffffff:x}")
        e(f"s_mov_b32 exec_hi, 0x{E0 >> 32:x}")
        g.label("L_POLL")
        e(f"buffer_load_dword {vr(vRd+2)}, {vr(vFl)}, {sr(S_P,4)}, 0 offen sc1")
        e(f"s_add_u32 {sr(sCnt)}, {sr(sCnt)}, 1")
        e(f"s_and_b32 {sr(sT2)}, {sr(sCnt)}, 7")
        e(f"s_mov_b32 {sr(sT3)}, 0")
        e(f"s_cmp_lg_u32 {sr(sT2)}, 0")
        e("s_cbranch_scc1 L_POLL_NODONE")
        c("every 8th poll: fall back on the 'done' bytes")
        e(f"buffer_load_dwordx2 {vr(vRd,2)}, {vr(vFl+2)}, {sr(S_D,4)}, 0 offen sc1")
        e("s_waitcnt vmcnt(0)")
        e(f"v_readfirstlane_b32 {sr(sT0)}, {vr(vRd)}")
        e(f"v_readfirstlane_b32 {sr(sT1)}, {vr(vRd+1)}")
        for r_ in (sT0, sT1):
            e(f"s_lshr_b32 {sr(r_)}, {sr(r_)}, 1")
            e(f"s_and_b32 {sr(r_)}, {sr(r_)}, 0x01010101")
            e(f"s_mul_i32 {sr(r_)}, {sr(r_)}, 0x01020408")
            e(f"s_bfe_u32 {sr(r_)}, {sr(r_)}, 0x40018")
        e(f"s_lshl_b32 {sr(sT1)}, {sr(sT1)}, 4")
        e(f"s_or_b32 {sr(sT3)}, {sr(sT0)}, {sr(sT1)}")
        g.label("L_POLL_NODONE")
        e("s_waitcnt vmcnt(0)")
        e(f"v_cmp_ne_u32 vcc, -1, {vr(vRd+2)}")
        e(f"s_cmp_gt_u32 {sr(sCnt)}, {SPIN}")
        e(f"s_cselect_b32 {sr(sT2)}, 0xff, 0")
        e(f"s_or_b32 {sr(sT3)}, {sr(sT3)}, {sr(sT2)}")
        e(f"s_or_b32 {sr(sT0)}, vcc_lo, {sr(sRpl)}")
        if NH == 8:
            e(f"s_or_b32 {sr(sT1)}, vcc_hi, {sr(sRpl)}")
            e(f"s_and_b32 {sr(sT0)}, {sr(sT0)}, {sr(sT1)}")
        if NH >= 4:
            e(f"s_lshr_b32 {sr(sT1)}, {sr(sT0)}, 16")
            e(f"s_and_b32 {sr(sT0)}, {sr(sT0)}, {sr(sT1)}")
        if NH >= 2:
            e(f"s_lshr_b32 {sr(sT1)}, {sr(sT0)}, 8")
            e(f"s_and_b32 {sr(sT0)}, {sr(sT0)}, {sr(sT1)}")
        e(f"s_and_b32 {sr(sT0)}, {sr(sT0)}, 0xff")
        e(f"s_or_b32 {sr(sT3)}, {sr(sT3)}, {sr(sT0)}")
        e(f"s_or_b32 {sr(sT3)}, {sr(sT3)}, {sr(sMask)}")
        e(f"s_cmp_eq_u32 {sr(sT3)}, {sr(sMask)}")
        e("s_cbranch_scc1 L_POLL_SAME")
        e(f"v_mov_b32 v2, {sr(sT3)}")
        e(f"ds_write_b32 {vr(vSy)}, v2 offset:4")
        if TS:
            e(f"s_cmp_lg_u32 {sr(sMask)}, 0")
            e("s_cbranch_scc1 L_POLL_NOTS")
            stamp(4)
            g.label("L_POLL_NOTS")
        e(f"s_mov_b32 {sr(sMask)}, {sr(sT3)}")
        e(f"s_cmp_eq_u32 {sr(sMask)}, 0xff")
        e("s_cbranch_scc1 L_POLL_DONE")
        e(f"s_mul_i32 {sr(sRpl)}, {sr(sMask)}, 0x01010101")
        e(f"s_andn2_b32 exec_lo, exec_lo, {sr(sRpl)}")
        e(f"s_andn2_b32 exec_hi, exec_hi, {sr(sRpl)}")
        g.label("L_POLL_SAME")
        report()
        if opt.psleep:
            e(f"s_sleep {opt.psleep}")
        e("s_branch L_POLL")
        g.label("L_POLL_DONE")
        e("s_mov_b64 exec, -1")
        report()
    stamp(5)
    stamp(6)
    e("s_branch L_PHASE2")

    g.label("L_G_ROLE")
    if opt.prio:
        e("s_setprio 2")
    e(f"s_lshr_b32 {sr(sSh)}, {sr(sW)}, 2")
    e(f"s_lshl_b32 {sr(sT0)}, {sr(sSh)}, 3")
    e(f"s_lshl_b32 {sr(sSh)}, {sr(sSh)}, 2")
    e(f"v_add_u32 {vr(vT)}, {sr(sT0)}, {vr(vSy)}")
    e(f"v_mov_b32 v4, {vr(vT)}")
    e(f"s_mov_b32 {sr(sIss)}, 0")
    e(f"s_mov_b32 {sr(sDone)}, 0")
    e(f"s_mov_b32 {sr(sFail)}, 0")
    g.label("L_GL")
    e(f"ds_read_b32 v2, {vr(vSy)} offset:4")
    e(f"s_add_u32 {sr(sCnt)}, {sr(sCnt)}, 1")
    e("s_waitcnt lgkmcnt(0)")
    e(f"v_readfirstlane_b32 {sr(sT0)}, v2")
    e(f"s_cmp_gt_u32 {sr(sCnt)}, {SPIN*20}")
    e(f"s_cselect_b32 {sr(sT1)}, 0xff, 0")
    e(f"s_or_b32 {sr(sT0)}, {sr(sT0)}, {sr(sT1)}")
    e(f"s_lshr_b32 {sr(sT0)}, {sr(sT0)}, {sr(sSh)}")
    e(f"s_and_b32 {sr(sT0)}, {sr(sT0)}, 15")
    e(f"s_andn2_b32 {sr(sNew)}, {sr(sT0)}, {sr(sIss)}")
    e("s_cbranch_scc1 L_GISSUE")
    if SENT:
        e(f"s_cmp_lg_u32 {sr(sCnt)}, 40")
        e("s_cbranch_scc1 L_GL_NOREP")
        e("s_waitcnt vmcnt(0)")
        report()
        g.label("L_GL_NOREP")
    e("s_sleep 1")
    e("s_branch L_GL")
    g.label("L_GISSUE")

    def gd(j, r):
        return vGd + j * 32 + r * 4
    for j in range(4):
        e(f"s_bitcmp1_b32 {sr(sNew)}, {j}")
        e(f"s_cbranch_scc0 L_GI_{j}")
        for hf in range(2):
            e(f"s_mov_b32 {sr(sT0)}, {j*24576 + hf*4096}")
            for r in range(4):
                e(f"buffer_load_dwordx4 {vr(gd(j,hf*4+r),4)}, {vr(vG)}, {sr(S_P,4)}, {sr(sT0)} offen offset:{1024*r} sc1")
        g.label(f"L_GI_{j}")
    e(f"s_or_b32 {sr(sIss)}, {sr(sIss)}, {sr(sNew)}")
    e(f"s_cmp_lg_u32 {sr(sIss)}, 15")
    e("s_cbranch_scc1 L_GL")
    stamp(4)
    e(f"s_or_b32 {sr(sT0)}, {sr(sNew)}, {sr(sDone)}")
    e(f"s_andn2_b32 {sr(sSet)}, 15, {sr(sT0)}")
    e(f"s_mov_b32 {sr(sPh)}, 0")
    e(f"s_bcnt1_i32_b32 {sr(sT0)}, {sr(sNew)}")
    e(f"s_cmp_eq_u32 {sr(sT0)}, 1")
    e("s_cbranch_scc1 L_GW8")
    e(f"s_cmp_eq_u32 {sr(sT0)}, 2")
    e("s_cbranch_scc1 L_GW16")
    e("s_waitcnt vmcnt(24)")
    e("s_branch L_PASS")
    g.label("L_GW16")
    e("s_waitcnt vmcnt(16)")
    e("s_branch L_PASS")
    g.label("L_GW8")
    e("s_waitcnt vmcnt(8)")
    g.label("L_PASS")
    for j in range(4):
        e(f"s_bitcmp1_b32 {sr(sSet)}, {j}")
        e(f"s_cbranch_scc0 L_GP_{j}")
        if SENT:
            b = gd(j, 0)
            e(f"v_max3_u32 v2, {vr(b)}, {vr(b+1)}, {vr(b+2)}")
            e(f"v_max3_u32 v3, {vr(b+3)}, {vr(b+4)}, {vr(b+5)}")
            for i in range(6, 30, 4):
                e(f"v_max3_u32 v2, v2, {vr(b+i)}, {vr(b+i+1)}")
                e(f"v_max3_u32 v3, v3, {vr(b+i+2)}, {vr(b+i+3)}")
            e(f"v_max3_u32 v2, v2, {vr(b+30)}, {vr(b+31)}")
            e(f"v_max_u32 v2, v2, v3")
            e(f"v_cmp_eq_u32 vcc, -1, v2")
            e(f"s_cmp_ge_u32 {sr(sFail)}, 100")
            e(f"s_cbranch_scc1 L_GA_{j}")
            e(f"s_cbranch_vccnz L_GP_{j}")
            g.label(f"L_GA_{j}")
        for r in range(8):
            for d in range(4):
                for hl in range(2):
                    a = vGa + r * 8 + 2 * d + hl
                    e(f"v_dot2_f32_bf16 {vr(a)}, {vr(gd(j,r)+d)}, {sr(sHI if hl else sLO)}, {vr(a)}")
        e(f"s_bitset1_b32 {sr(sDone)}, {j}")
        g.label(f"L_GP_{j}")
    e(f"s_cmp_lg_u32 {sr(sPh)}, 0")
    e("s_cbranch_scc1 L_PASS_DONE")
    e(f"s_mov_b32 {sr(sPh)}, 1")
    e(f"s_mov_b32 {sr(sSet)}, {sr(sNew)}")
    e(f"ds_read_b32 v5, {vr(vSy)}")
    e("s_waitcnt vmcnt(0)")
    e("s_branch L_PASS")
    g.label("L_PASS_DONE")
    if SENT:
        e(f"s_cmp_eq_u32 {sr(sDone)}, 15")
        e("s_cbranch_scc1 L_G_ALL")
        c("some partial still showed a sentinel: retry; after 3 failures wait for the done bytes")
        e(f"s_mov_b32 {sr(sIss)}, {sr(sDone)}")
        e(f"s_add_u32 {sr(sFail)}, {sr(sFail)}, 1")
        e(f"s_cmp_lt_u32 {sr(sFail)}, 4")
        e("s_cbranch_scc1 L_GL")
        report()
        e(f"s_mov_b32 {sr(sCnt2)}, 0")
        g.label("L_SLOW")
        e(f"buffer_load_dwordx2 v[2:3], {vr(vFl+2)}, {sr(S_D,4)}, 0 offen sc1")
        e(f"s_add_u32 {sr(sCnt2)}, {sr(sCnt2)}, 1")
        e("s_waitcnt vmcnt(0)")
        e(f"v_readfirstlane_b32 {sr(sT0)}, v2")
        e(f"v_readfirstlane_b32 {sr(sT1)}, v3")
        e(f"s_cmp_eq_u32 {sr(sSh)}, 0")
        e(f"s_cselect_b32 {sr(sT0)}, {sr(sT0)}, {sr(sT1)}")
        e(f"s_and_b32 {sr(sT0)}, {sr(sT0)}, 0x02020202")
        e(f"s_mov_b32 {sr(sFail)}, 100")
        e(f"s_cmp_eq_u32 {sr(sT0)}, 0x02020202")
        e("s_cbranch_scc1 L_GL")
        e(f"s_cmp_gt_u32 {sr(sCnt2)}, {SPIN}")
        e("s_cbranch_scc1 L_GL")
        e("s_sleep 8")
        e("s_branch L_SLOW")
        g.label("L_G_ALL")
    c("all waves of this WG must have left phase 1 before the image is written")
    e(f"s_mov_b32 {sr(sCnt2)}, 0")
    g.label("L_GC0")
    e("s_waitcnt lgkmcnt(0)")
    e(f"v_readfirstlane_b32 {sr(sT0)}, v5")
    e(f"s_cmp_eq_u32 {sr(sT0)}, 8")
    e("s_cbranch_scc1 L_GC0_DONE")
    e(f"s_add_u32 {sr(sCnt2)}, {sr(sCnt2)}, 1")
    e(f"s_cmp_gt_u32 {sr(sCnt2)}, {SPIN*20}")
    e("s_cbranch_scc1 L_GC0_DONE")
    e(f"ds_read_b32 v5, {vr(vSy)}")
    e("s_branch L_GC0")
    g.label("L_GC0_DONE")
    for r in range(8):
        pk = vGd + 4 * r
        for d in range(4):
            e(f"v_cvt_pk_bf16_f32 {vr(pk+d)}, {vr(vGa+r*8+2*d)}, {vr(vGa+r*8+2*d+1)}")
        e(f"ds_write_b128 {vr(vGw)}, {vr(pk,4)} offset:{1024*r}")
    e("s_waitcnt lgkmcnt(0)")
    e("s_mov_b64 exec, 1")
    e(f"ds_add_u32 v4, {vr(vT+1)} offset:16")
    e("s_mov_b64 exec, -1")
    stamp(5)
    if TS:
        e(f"s_mov_b32 {sr(sCnt)}, {sr(sFail)}")
    if SENT:
        report()
    stamp(6)
    if opt.prio:
        e("s_setprio 0")

    g.label("L_PHASE2")
    e(f"s_mov_b32 {sr(sCnt2)}, 0")
    e(f"s_mul_i32 {sr(sT2)}, {sr(sW)}, 12")
    e(f"s_add_u32 {sr(sT2)}, {sr(sT2)}, 12")
    g.label("L_W2")
    e(f"ds_read_b64 {vr(2,2)}, {vr(vSy)} offset:16")
    e(f"s_add_u32 {sr(sCnt2)}, {sr(sCnt2)}, 1")
    e("s_waitcnt lgkmcnt(0)")
    e(f"v_readfirstlane_b32 {sr(sT0)}, v2")
    e(f"v_readfirstlane_b32 {sr(sT1)}, v3")
    e(f"s_cmp_gt_u32 {sr(sCnt2)}, {SPIN*20}")
    e("s_cbranch_scc1 L_W2_DONE")
    e(f"s_cmp_ge_u32 {sr(sT1)}, {sr(sT2)}")
    e(f"s_cselect_b32 {sr(sT0)}, {sr(sT0)}, 0")
    e(f"s_cmp_eq_u32 {sr(sT0)}, 3")
    e("s_cbranch_scc1 L_W2_DONE")
    e("s_sleep 1")
    e("s_branch L_W2")
    g.label("L_W2_DONE")
    stamp(7)

    vQf = 52
    vKP = 100
    vSa = 128
    vPf = 160
    NS = 7
    pend = []

    def wait_for(tags):
        idx = max((pend.index(t_) for t_ in tags if t_ in pend), default=-1)
        if idx < 0:
            return
        after = len(pend) - idx - 1
        e(f"s_waitcnt lgkmcnt({min(15, after)})")
        del pend[:idx + 1]

    reads = []
    for s in range(12):
        reads.append(('q', s))
        reads.append(('kp', 2 * s))
        reads.append(('kp', 2 * s + 1))
    rp = [0]

    def do_read():
        tag = reads[rp[0]]
        rp[0] += 1
        if tag[0] == 'q':
            s = tag[1]
            e(f"ds_read_b128 {vr(vQf+4*s,4)}, {vr(vQa+s)}")
        else:
            n = tag[1]
            s, rt = n // 2, n % 2
            e(f"ds_read_b128 {vr(vKP+4*(n%NS),4)}, {vr(vFr)} offset:{(rt*12+s)*1024}")
        pend.append(tag)

    def can_issue(nmfma_done):
        if rp[0] >= len(reads):
            return False
        tag = reads[rp[0]]
        if tag[0] == 'q':
            return True
        return tag[1] < nmfma_done + NS

    while can_issue(0):
        do_read()
    for n in range(24):
        s, rt = n // 2, n % 2
        wait_for([('q', s), ('kp', n)])
        a = vSa + 16 * rt
        cin = "0" if s == 0 else vr(a, 16)
        e(f"v_mfma_f32_32x32x16_bf16 {vr(a,16)}, {vr(vKP+4*(n%NS),4)}, {vr(vQf+4*s,4)}, {cin}")
        while can_issue(n + 1):
            do_read()
    c("check VP ready (read now, test after softmax)")
    e(f"ds_read_b32 v2, {vr(vSy)} offset:24")
    e("s_nop 7")
    e("s_nop 1")
    c("softmax")
    vM, vM2, vSum, vSum2 = 88, 89, 90, 91
    e(f"v_max3_f32 {vr(vM)}, {vr(vSa)}, {vr(vSa+1)}, {vr(vSa+2)}")
    e(f"v_max3_f32 {vr(vM2)}, {vr(vSa+3)}, {vr(vSa+4)}, {vr(vSa+5)}")
    for i in range(6, 30, 4):
        e(f"v_max3_f32 {vr(vM)}, {vr(vM)}, {vr(vSa+i)}, {vr(vSa+i+1)}")
        e(f"v_max3_f32 {vr(vM2)}, {vr(vM2)}, {vr(vSa+i+2)}, {vr(vSa+i+3)}")
    e(f"v_max3_f32 {vr(vM)}, {vr(vM)}, {vr(vSa+30)}, {vr(vSa+31)}")
    e(f"v_max_f32 {vr(vM)}, {vr(vM)}, {vr(vM2)}")
    e(f"v_mov_b32 {vr(vM2)}, {vr(vM)}")
    e("s_nop 1")
    e(f"v_permlane32_swap_b32 {vr(vM)}, {vr(vM2)}")
    e("s_nop 1")
    e(f"v_max_f32 {vr(vM)}, {vr(vM)}, {vr(vM2)}")
    e(f"v_mul_f32 {vr(vM)}, {sr(sC)}, {vr(vM)}")
    for i in range(32):
        e(f"v_fma_f32 {vr(vSa+i)}, {vr(vSa+i)}, {sr(sC)}, -{vr(vM)}")
    for i in range(32):
        e(f"v_exp_f32 {vr(vSa+i)}, {vr(vSa+i)}")
    e("s_nop 0")
    e(f"v_add_f32 {vr(vSum)}, {vr(vSa)}, {vr(vSa+1)}")
    e(f"v_add_f32 {vr(vSum2)}, {vr(vSa+2)}, {vr(vSa+3)}")
    for i in range(4, 32, 2):
        e(f"v_add_f32 {vr(vSum)}, {vr(vSum)}, {vr(vSa+i)}")
        e(f"v_add_f32 {vr(vSum2)}, {vr(vSum2)}, {vr(vSa+i+1)}")
    e(f"v_add_f32 {vr(vSum)}, {vr(vSum)}, {vr(vSum2)}")
    e(f"v_mov_b32 {vr(vSum2)}, {vr(vSum)}")
    e("s_nop 1")
    e(f"v_permlane32_swap_b32 {vr(vSum)}, {vr(vSum2)}")
    e("s_nop 1")
    e(f"v_add_f32 {vr(vSum)}, {vr(vSum)}, {vr(vSum2)}")
    e(f"v_rcp_f32 {vr(vSum)}, {vr(vSum)}")
    e("s_nop 0")
    for i in range(32):
        e(f"v_mul_f32 {vr(vSa+i)}, {vr(vSa+i)}, {vr(vSum)}")
    for i in range(16):
        e(f"v_cvt_pk_bf16_f32 {vr(vPf+i)}, {vr(vSa+2*i)}, {vr(vSa+2*i+1)}")
    stamp(8)
    e(f"s_mov_b32 {sr(sCnt2)}, 0")
    g.label("L_W3")
    e("s_waitcnt lgkmcnt(0)")
    e(f"v_readfirstlane_b32 {sr(sT0)}, v2")
    e(f"s_cmp_eq_u32 {sr(sT0)}, 3")
    e("s_cbranch_scc1 L_W3_DONE")
    e(f"s_add_u32 {sr(sCnt2)}, {sr(sCnt2)}, 1")
    e(f"s_cmp_gt_u32 {sr(sCnt2)}, {SPIN*20}")
    e("s_cbranch_scc1 L_W3_DONE")
    e(f"ds_read_b32 v2, {vr(vSy)} offset:24")
    e("s_branch L_W3")
    g.label("L_W3_DONE")
    stamp(9)

    vVP = 100
    vOa = 128
    vOa2 = 176
    vOp = 52
    vOs = 208
    seq = [(jp, s, jj) for jp in range(3) for s in range(4) for jj in range(2)]
    VPB = 24576
    pend.clear()

    def vp_read(n):
        jp, s, jj = seq[n]
        e(f"ds_read_b128 {vr(vVP+4*(n%NS),4)}, {vr(vFr)} offset:{VPB+((2*jp+jj)*4+s)*1024}")
        pend.append(('vp', n))
    stp = opt.stpol
    for n in range(NS):
        vp_read(n)
    issued = NS

    def epilogue(jp):
        ob = vOa if jp % 2 == 0 else vOa2
        for jj in range(2):
            a = ob + 16 * jj
            for a2 in range(2):
                pk = vOp + (jj * 2 + a2) * 4
                for d in range(4):
                    e(f"v_cvt_pk_bf16_f32 {vr(pk+d)}, {vr(a+8*a2+2*d)}, {vr(a+8*a2+2*d+1)}")
                e(f"ds_write_b128 {vr(vOw+2*jj+a2)}, {vr(pk,4)} offset:{128*jp}")
                pend.append(('w', jp, jj, a2))
        for i in range(4):
            e(f"ds_read_b128 {vr(vOs+16*jp+4*i,4)}, {vr(vOr)} offset:{128*jp+3072*i}")
            pend.append(('r', jp, i))

    def stores(jp):
        for i in range(4):
            wait_for([('r', jp, i)])
            e(f"buffer_store_dwordx4 {vr(vOs+16*jp+4*i,4)}, {vr(vOg)}, {sr(S_O,4)}, {sr(sI+i)} offen offset:{128*jp} {stp}")

    for n in range(24):
        jp, s, jj = seq[n]
        wait_for([('vp', n)])
        ob = vOa if jp % 2 == 0 else vOa2
        a = ob + 16 * jj
        cin = "0" if s == 0 else vr(a, 16)
        e(f"v_mfma_f32_32x32x16_bf16 {vr(a,16)}, {vr(vVP+4*(n%NS),4)}, {vr(vPf+4*s,4)}, {cin}")
        if issued < 24:
            vp_read(issued)
            issued += 1
        if n % 8 == 1 and jp >= 1:
            e("s_nop 7")
            e("s_nop 1")
            epilogue(jp - 1)
        if n % 8 == 4 and jp >= 1:
            stores(jp - 1)
    e("s_nop 7")
    e("s_nop 3")
    epilogue(2)
    stores(2)
    stamp(10)
    if TS:
        e("s_waitcnt vmcnt(0)")
        stamp(11)
        e("s_waitcnt lgkmcnt(0)")
        e(f"s_lshl_b32 s3, {sr(sW)}, 2")
        e(f"s_lshr_b32 s3, 0xff321ff0, s3")
        e("s_and_b32 s3, s3, 15")
        e("s_cmp_eq_u32 s3, 15")
        e("s_cbranch_scc1 L_END")
        e(f"s_add_u32 {sr(S_P)}, s18, 0x1000000")
        e(f"s_addc_u32 {sr(S_P+1)}, s19, 0")
        e(f"s_mov_b32 {sr(S_P+2)}, 0x20000")
        e("s_mov_b64 exec, 1")
        e(f"s_lshl_b32 {sr(sT0)}, s3, 7")
        e("s_lshl_b32 s3, s2, 9")
        e(f"s_add_u32 s3, s3, {sr(sT0)}")
        e(f"v_mov_b32 {vr(vT)}, s3")
        e(f"s_getreg_b32 {sr(sTS+24)}, hwreg(HW_REG_XCC_ID)")
        e(f"s_mov_b32 {sr(sTS+25)}, {sr(sCnt)}")
        for i in range(13):
            e(f"v_mov_b32 {vr(vT+1)}, {sr(sTS+2*i)}")
            e(f"v_mov_b32 {vr(vT+2)}, {sr(sTS+2*i+1)}")
            e(f"buffer_store_dwordx2 {vr(vT+1,2)}, {vr(vT)}, {sr(S_P,4)}, 0 offen offset:{8*i}")
            e("s_nop 1")
    g.label("L_END")
    e("s_endpgm")

    return HEADER.format(n=NAME) + "\n".join(g.lines) + FOOTER.format(n=NAME, vgpr=256, acc=256)


if __name__ == "__main__":
    ap = argparse.ArgumentParser()
    ap.add_argument("-o", default=f"cdna_kernels/{NAME}.s")
    ap.add_argument("--ts", type=int, default=0)
    ap.add_argument("--qpre", type=int, default=1)
    ap.add_argument("--qearly", type=int, default=0)
    ap.add_argument("--qdepth", type=int, default=24)
    ap.add_argument("--sent", type=int, default=0)
    ap.add_argument("--nh", type=int, default=2)
    ap.add_argument("--pbar", type=int, default=1)
    ap.add_argument("--prio", type=int, default=0)
    ap.add_argument("--psleep", type=int, default=1)
    ap.add_argument("--stpol", default="sc1")
    opt = ap.parse_args()
    open(opt.o, "w").write(gen(opt))
```

```python
import sys, math, argparse, struct

NAME = "standalone__low_rank_proj_linformer__prompt"

HEADER = """; Kernarg layout for this problem (64 bytes, ptrs only, base s[0:1]):
; @launch grid=(256,1,1) block=(640,1,1) lds=163840
.amdgcn_target "amdgcn-amd-amdhsa--gfx950"
.text
.globl {n}_kernel
.p2align 8
.type {n}_kernel,@function
{n}_kernel:
"""

FOOTER = """
.section .rodata,"a"
.p2align 6
.amdhsa_kernel {n}_kernel
  .amdhsa_next_free_vgpr {vgpr}
  .amdhsa_next_free_sgpr 102
  .amdhsa_accum_offset {acc}
  .amdhsa_group_segment_fixed_size 0
  .amdhsa_kernarg_size 64
  .amdhsa_user_sgpr_count 2
  .amdhsa_user_sgpr_kernarg_segment_ptr 1
  .amdhsa_system_sgpr_workgroup_id_x 1
.end_amdhsa_kernel
"""


class G:
    def __init__(self):
        self.lines = []

    def e(self, s):
        self.lines.append("    " + s)

    def c(self, s):
        self.lines.append("    ; " + s)

    def label(self, s):
        self.lines.append(s + ":")


def vr(a, n=1):
    return f"v{a}" if n == 1 else f"v[{a}:{a+n-1}]"


def sr(a, n=1):
    return f"s{a}" if n == 1 else f"s[{a}:{a+n-1}]"


def gen(opt):
    g = G()
    e, c = g.e, g.c
    TS = opt.ts
    SPIN = 400000
    WF = opt.wflag
    assert not (WF and opt.pdelay)

    S_KV, S_E, S_Q, S_O, S_P, S_D = 20, 24, 28, 32, 36, 40
    sW, sH, sSub, sT, sNH = 44, 45, 46, 47, 48
    sT0, sT1, sT2, sT3 = 49, 50, 51, 52
    sRT, sCG = 53, 54
    sLO, sHI = 55, 56
    sC = 57
    sI = 58
    sM0K, sM0E = 62, 63
    sCnt = 64
    sCnt2 = 65
    sTS = 66
    sDH = 92
    sNeed = 93
    sXm = 94
    S_F = 96
    sPo = 4
    sIss, sNew, sMask, sMask2 = 7, 8, 9, 10

    vLane = 1
    vSy, vOne, vG, vGw, vFr, vOr, vOg = 2, 3, 4, 5, 6, 7, 8
    vOw = 9
    vX = 14
    vQa = 16
    vK = 32
    vE = 35
    vEa = 36
    vKa = 38
    vPo = 44
    vFo = 45
    vAcc = 48
    vEf = 60
    vKf = 76
    vPk = 124
    vT = 132

    IMG = 98304
    SYNC = 147456
    uid = [0]

    def newlab(p):
        uid[0] += 1
        return f"L_{p}_{uid[0]}"

    def stamp(i):
        if TS:
            e(f"s_memrealtime {sr(sTS+2*i,2)}")

    e("s_cmp_ge_u32 s2, 256")
    e("s_cbranch_scc1 L_END")
    stamp(0)
    e("s_load_dwordx16 s[4:19], s[0:1], 0")
    e(f"v_and_b32 {vr(vLane)}, 63, v0")
    e(f"v_lshrrev_b32 {vr(vT)}, 6, v0")
    e(f"s_and_b32 {sr(sH)}, s2, 31")
    e(f"v_readfirstlane_b32 {sr(sW)}, {vr(vT)}")
    e(f"s_lshr_b32 {sr(sSub)}, s2, 5")
    e(f"v_mul_u32_u24 {vr(vT+2)}, 171, {vr(vLane)}")
    e(f"v_lshlrev_b32 {vr(vT+1)}, 4, {vr(vLane)}")
    e(f"s_mul_i32 {sr(sT0)}, {sr(sH)}, 786432")
    e(f"s_cmp_ge_u32 {sr(sW)}, 8")
    e("s_cbranch_scc1 L_HELP")
    e(f"s_movk_i32 {sr(sT3)}, 192")
    e(f"s_lshr_b32 {sr(sT)}, {sr(sSub)}, 2")
    e(f"s_bfe_u32 {sr(sNH)}, {sr(sSub)}, 0x10001")
    e(f"s_and_b32 {sr(sDH)}, {sr(sSub)}, 1")
    e(f"v_lshrrev_b32 {vr(vT+3)}, 11, {vr(vT+2)}")
    e(f"v_mad_u32_u24 {vr(vK)}, {vr(vT+3)}, {sr(sT3)}, {vr(vT+1)}")
    e(f"v_add_u32 {vr(vT+3)}, 10944, {vr(vT+2)}")
    e(f"v_lshrrev_b32 {vr(vT+3)}, 11, {vr(vT+3)}")
    e(f"v_and_b32 {vr(vT+4)}, 32, {vr(vLane)}")
    e(f"v_xor_b32 {vr(vT+4)}, {vr(vT+4)}, {vr(vT+1)}")
    e(f"v_mad_u32_u24 {vr(vK+1)}, {vr(vT+3)}, {sr(sT3)}, {vr(vT+4)}")
    e(f"v_add_u32 {vr(vT+3)}, 21888, {vr(vT+2)}")
    e(f"v_lshrrev_b32 {vr(vT+3)}, 11, {vr(vT+3)}")
    e(f"v_xor_b32 {vr(vT+4)}, 32, {vr(vT+1)}")
    e(f"v_mad_u32_u24 {vr(vK+2)}, {vr(vT+3)}, {sr(sT3)}, {vr(vT+4)}")
    c("K/V source offset: h*786432 + nh*393216 + dh*192 + w*6144")
    e(f"s_mul_i32 {sr(sM0K)}, {sr(sW)}, 3072")
    e(f"s_mul_i32 {sr(sT2)}, {sr(sDH)}, 192")
    e(f"s_lshl1_add_u32 {sr(sT2)}, {sr(sM0K)}, {sr(sT2)}")
    e(f"s_mul_i32 {sr(sT1)}, {sr(sNH)}, 393216")
    e(f"s_add_u32 {sr(sT1)}, {sr(sT1)}, {sr(sT0)}")
    e(f"s_add_u32 {sr(sT1)}, {sr(sT1)}, {sr(sT2)}")
    e(f"s_sub_u32 {sr(S_KV+2)}, 393216, {sr(sT2)}")
    e(f"s_mov_b32 {sr(S_KV+3)}, 0x00020000")
    c("E pattern")
    e(f"v_lshrrev_b32 {vr(vT)}, 3, {vr(vLane)}")
    e(f"s_lshl_b32 {sr(sT2)}, {sr(sW)}, 3")
    e(f"v_add_u32 {vr(vT+2)}, {sr(sT2)}, {vr(vT)}")
    e(f"v_bfe_u32 {vr(vT+3)}, {vr(vT+2)}, 1, 3")
    e(f"v_and_b32 {vr(vT+4)}, 7, {vr(vLane)}")
    e(f"v_xor_b32 {vr(vT+3)}, {vr(vT+3)}, {vr(vT+4)}")
    e(f"v_lshlrev_b32 {vr(vT+3)}, 4, {vr(vT+3)}")
    e(f"v_lshl_add_u32 {vr(vE)}, {vr(vT+2)}, 12, {vr(vT+3)}")
    e(f"s_lshl_b32 {sr(sM0E)}, {sr(sW)}, 10")
    e(f"s_add_u32 {sr(sM0E)}, {sr(sM0E)}, {IMG}")
    e(f"s_lshl_b32 {sr(sT2)}, {sr(sNH)}, 11")
    e(f"s_sub_u32 {sr(S_E+2)}, 262144, {sr(sT2)}")
    e(f"s_mov_b32 {sr(S_E+3)}, 0x00020000")
    e(f"s_cmp_eq_u32 {sr(sT)}, 0")
    e("s_waitcnt lgkmcnt(0)")
    e(f"s_cselect_b32 {sr(S_KV)}, s6, s8")
    e(f"s_cselect_b32 {sr(S_KV+1)}, s7, s9")
    e(f"s_cselect_b32 {sr(S_E)}, s10, s12")
    e(f"s_cselect_b32 {sr(S_E+1)}, s11, s13")
    e(f"s_add_u32 {sr(S_KV)}, {sr(S_KV)}, {sr(sT1)}")
    e(f"s_addc_u32 {sr(S_KV+1)}, {sr(S_KV+1)}, 0")
    e(f"s_add_u32 {sr(S_E)}, {sr(S_E)}, {sr(sT2)}")
    e(f"s_addc_u32 {sr(S_E+1)}, {sr(S_E+1)}, 0")

    vq = []

    def issue_k(t, q):
        e(f"s_add_u32 m0, {sr(sM0K)}, {24576*(t%4)}")
        e(f"s_mov_b32 {sr(sT3)}, {49152*t}")
        for i in range(3):
            e(f"buffer_load_dwordx4 {vr(vK+i)}, {sr(S_KV,4)}, {sr(sT3)} offen offset:{1024*i} {opt.kpol} lds")
        q.extend([t] * 3)

    def issue_e(t, q):
        for st in range(2):
            e(f"s_add_u32 m0, {sr(sM0E)}, {16384*(t%3)+8192*st}")
            e(f"s_movk_i32 {sr(sT3)}, {256*t+128*st}")
            e(f"buffer_load_dwordx4 {vr(vE)}, {sr(S_E,4)}, {sr(sT3)} offen lds")
        q.extend([t] * 2)

    NPB = 3 if opt.pbar else 0
    for t in range(4):
        issue_k(t, vq)
        if t < 3:
            issue_e(t, vq)
            if opt.pbar:
                e("s_barrier")

    c("remaining SRDs")
    e(f"s_and_b32 {sr(sRT)}, {sr(sW)}, 3")
    e(f"s_lshr_b32 {sr(sCG)}, {sr(sW)}, 2")
    e(f"s_mul_i32 {sr(sT1)}, {sr(sSub)}, 98304")
    e(f"s_add_u32 {sr(sT1)}, {sr(sT1)}, {sr(sT0)}")
    e(f"s_add_u32 {sr(S_O)}, s14, {sr(sT1)}")
    e(f"s_addc_u32 {sr(S_O+1)}, s15, 0")
    e(f"s_mov_b32 {sr(S_O+2)}, 98304")
    e(f"s_mov_b32 {sr(S_O+3)}, 0x00020000")
    e(f"s_mul_i32 {sr(sT1)}, {sr(sH)}, 98304")
    e(f"s_add_u32 {sr(S_P)}, s18, {sr(sT1)}")
    e(f"s_addc_u32 {sr(S_P+1)}, s19, 0")
    e(f"s_mov_b32 {sr(S_P+2)}, 98304")
    e(f"s_mov_b32 {sr(S_P+3)}, 0x00020000")

    def flag_srd():
        e(f"s_mul_i32 {sr(sT1)}, {sr(sH)}, 4352")
        e(f"s_add_u32 {sr(sT1)}, {sr(sT1)}, 0x800000")
        e(f"s_add_u32 {sr(S_F)}, s18, {sr(sT1)}")
        e(f"s_addc_u32 {sr(S_F+1)}, s19, 0")
        e(f"s_mov_b32 {sr(S_F+2)}, {256 if WF else 32}")
        e(f"s_mov_b32 {sr(S_F+3)}, 0x00020000")
    flag_srd()
    e(f"s_mov_b32 {sr(sLO)}, 0x00003f80")
    e(f"s_mov_b32 {sr(sHI)}, 0x3f800000")
    cst = math.log2(math.e) / math.sqrt(192.0)
    e(f"s_mov_b32 {sr(sC)}, 0x{struct.unpack('<I', struct.pack('<f', cst))[0]:08x}")
    for i in range(4):
        e(f"s_mov_b32 {sr(sI+i)}, {3072*i}")
    e(f"v_mov_b32 {vr(vSy)}, {SYNC}")
    e(f"v_mov_b32 {vr(vOne)}, 1")
    if WF:
        e(f"s_lshl_b32 {sr(sT1)}, {sr(sSub)}, 3")
        e(f"s_add_u32 {sr(sT1)}, {sr(sT1)}, {sr(sW)}")
        e(f"s_lshl_b32 {sr(sT1)}, {sr(sT1)}, 2")
    else:
        e(f"s_lshl_b32 {sr(sT1)}, {sr(sSub)}, 2")
    e(f"v_mov_b32 {vr(vFo)}, {sr(sT1)}")

    c("E frag addrs")
    e(f"v_lshrrev_b32 {vr(vT+2)}, 4, {vr(vLane)}")
    e(f"v_and_b32 {vr(vT+3)}, 15, {vr(vLane)}")
    e(f"v_lshrrev_b32 {vr(vT+5)}, 1, {vr(vT+3)}")
    e(f"v_xor_b32 {vr(vT+5)}, {vr(vT+5)}, {vr(vT+2)}")
    e(f"v_lshlrev_b32 {vr(vT+5)}, 4, {vr(vT+5)}")
    e(f"v_lshl_add_u32 {vr(vT+5)}, {vr(vT+3)}, 7, {vr(vT+5)}")
    e(f"s_lshl_b32 {sr(sT1)}, {sr(sRT)}, 11")
    e(f"s_add_u32 {sr(sT1)}, {sr(sT1)}, {IMG}")
    e(f"v_add_u32 {vr(vEa)}, {sr(sT1)}, {vr(vT+5)}")
    e(f"v_xor_b32 {vr(vEa+1)}, 64, {vr(vEa)}")

    c("K frag addrs: column tiles (4cg, 4cg+1, 2+cg)")
    e(f"v_bfe_u32 {vr(vT+5)}, {vr(vLane)}, 2, 2")
    e(f"v_lshl_add_u32 {vr(vT+5)}, {vr(vT+2)}, 3, {vr(vT+5)}")
    e(f"v_mul_u32_u24 {vr(vT+5)}, 192, {vr(vT+5)}")
    e(f"v_and_b32 {vr(vT+6)}, 3, {vr(vLane)}")
    e(f"v_lshl_add_u32 {vr(vT+5)}, {vr(vT+6)}, 3, {vr(vT+5)}")
    e(f"v_bfe_u32 {vr(vT+6)}, {vr(vLane)}, 4, 1")
    e(f"v_lshlrev_b32 {vr(vT+6)}, 5, {vr(vT+6)}")
    e(f"s_lshl_b32 {sr(sT1)}, {sr(sCG)}, 7")
    e(f"v_xad_u32 {vr(vKa)}, {vr(vT+6)}, {sr(sT1)}, {vr(vT+5)}")
    e(f"v_xor_b32 {vr(vKa+1)}, 32, {vr(vKa)}")
    e(f"s_lshl_b32 {sr(sT1)}, {sr(sCG)}, 5")
    e(f"s_add_u32 {sr(sT1)}, {sr(sT1)}, 64")
    e(f"v_xad_u32 {vr(vKa+2)}, {vr(vT+6)}, {sr(sT1)}, {vr(vT+5)}")
    for a in range(3):
        e(f"v_add_u32 {vr(vKa+3+a)}, 49152, {vr(vKa+a)}")

    c("partial store voffset + soffsets")
    e(f"s_mul_i32 {sr(sT0)}, {sr(sSub)}, 12288")
    e(f"s_lshl_b32 {sr(sT2)}, {sr(sCG)}, 13")
    e(f"s_cmp_eq_u32 {sr(sT)}, 0")
    e("s_cbranch_scc0 L_PO_V")
    e(f"v_lshlrev_b32 {vr(vT+5)}, 4, {vr(vT+3)}")
    e(f"v_lshl_add_u32 {vr(vT+5)}, {vr(vT+6)}, 6, {vr(vT+5)}")
    e(f"v_lshrrev_b32 {vr(vT+6)}, 5, {vr(vLane)}")
    e(f"v_lshl_add_u32 {vr(vPo)}, {vr(vT+6)}, 9, {vr(vT+5)}")
    e(f"s_lshr_b32 {sr(sT1)}, {sr(sRT)}, 1")
    e(f"s_lshl_b32 {sr(sT1)}, {sr(sT1)}, 10")
    e(f"s_add_u32 {sr(sT0)}, {sr(sT0)}, {sr(sT1)}")
    e(f"s_and_b32 {sr(sT1)}, {sr(sRT)}, 1")
    e(f"s_lshl_b32 {sr(sT1)}, {sr(sT1)}, 8")
    e(f"s_add_u32 {sr(sT0)}, {sr(sT0)}, {sr(sT1)}")
    e(f"s_add_u32 {sr(sPo)}, {sr(sT0)}, {sr(sT2)}")
    e(f"s_lshl_b32 {sr(sT1)}, {sr(sCG)}, 11")
    e(f"s_add_u32 {sr(sT1)}, {sr(sT1)}, 4096")
    e(f"s_add_u32 {sr(sPo+1)}, {sr(sT0)}, {sr(sT1)}")
    e(f"s_mov_b32 {sr(sXm)}, 0xffff")
    e(f"s_mov_b32 {sr(sXm+1)}, 0xffff")
    e("s_branch L_PO_DONE")
    g.label("L_PO_V")
    e(f"v_and_b32 {vr(vT+5)}, 3, {vr(vLane)}")
    e(f"v_bfe_u32 {vr(vT+4)}, {vr(vLane)}, 2, 1")
    e(f"v_lshl_or_b32 {vr(vT+5)}, {vr(vT+4)}, 3, {vr(vT+5)}")
    e(f"v_bfe_u32 {vr(vT+4)}, {vr(vLane)}, 3, 1")
    e(f"v_lshl_or_b32 {vr(vT+5)}, {vr(vT+4)}, 2, {vr(vT+5)}")
    e(f"v_or_b32 {vr(vT+5)}, {vr(vT+5)}, {vr(vT+6)}")
    e(f"v_lshlrev_b32 {vr(vT+5)}, 4, {vr(vT+5)}")
    e(f"v_lshrrev_b32 {vr(vT+6)}, 5, {vr(vLane)}")
    e(f"v_lshl_add_u32 {vr(vPo)}, {vr(vT+6)}, 8, {vr(vT+5)}")
    e(f"s_lshl_b32 {sr(sT1)}, {sr(sRT)}, 10")
    e(f"s_add_u32 {sr(sT0)}, {sr(sT0)}, {sr(sT1)}")
    e(f"s_add_u32 {sr(sPo)}, {sr(sT0)}, {sr(sT2)}")
    e(f"s_lshl_b32 {sr(sT1)}, {sr(sCG)}, 8")
    e(f"s_add_u32 {sr(sT1)}, {sr(sT1)}, 4096")
    e(f"s_add_u32 {sr(sPo+1)}, {sr(sT0)}, {sr(sT1)}")
    e(f"s_mov_b32 {sr(sXm)}, -1")
    e(f"s_mov_b32 {sr(sXm+1)}, 0")
    g.label("L_PO_DONE")

    c("gather / frag addresses: 3 KiB contiguous per wave and partial image")
    e(f"v_lshlrev_b32 {vr(vFr)}, 4, {vr(vLane)}")
    e(f"v_add_u32 {vr(vG)}, {sr(sM0K)}, {vr(vFr)}")
    e(f"v_add_u32 {vr(vFr)}, {IMG}, {vr(vFr)}")
    e(f"v_add_u32 {vr(vGw)}, {sr(sM0K)}, {vr(vFr)}")

    c("Q frag addrs")
    e(f"s_mul_i32 {sr(sT1)}, {sr(sW)}, 12288")
    e(f"v_and_b32 {vr(vT+3)}, 31, {vr(vLane)}")
    e(f"v_lshrrev_b32 {vr(vT+2)}, 5, {vr(vLane)}")
    e(f"v_mul_u32_u24 {vr(vT+5)}, 3, {vr(vT+3)}")
    for L in range(3):
        e(f"v_add_u32 {vr(vT+6)}, {L}, {vr(vT+5)}")
        e(f"v_bfe_u32 {vr(vT+4)}, {vr(vT+6)}, 1, 3")
        e(f"v_xor_b32 {vr(vT+4)}, {vr(vT+4)}, {vr(vT+2)}")
        e(f"v_lshlrev_b32 {vr(vT+4)}, 4, {vr(vT+4)}")
        e(f"v_lshl_add_u32 {vr(vT+6)}, {vr(vT+6)}, 7, {sr(sT1)}")
        for s4 in range(4):
            if s4 == 0:
                e(f"v_add_u32 {vr(vQa+4*L)}, {vr(vT+4)}, {vr(vT+6)}")
            elif s4 < 3:
                e(f"v_xad_u32 {vr(vQa+4*L+s4)}, {vr(vT+4)}, {32*s4}, {vr(vT+6)}")
            else:
                e(f"v_xor_b32 {vr(vT+1)}, 96, {vr(vT+4)}")
                e(f"v_add_u32 {vr(vQa+4*L+s4)}, {vr(vT+1)}, {vr(vT+6)}")
    c("O staging addrs")
    e(f"v_and_b32 {vr(vT+4)}, 7, {vr(vT+3)}")
    e(f"v_xor_b32 {vr(vT+4)}, {vr(vT+4)}, {vr(vT+2)}")
    e(f"v_lshlrev_b32 {vr(vT+4)}, 4, {vr(vT+4)}")
    e(f"v_lshl_add_u32 {vr(vT+6)}, {vr(vT+5)}, 7, {sr(sT1)}")
    for c2 in range(4):
        if c2 == 0:
            e(f"v_add_u32 {vr(vOw)}, {vr(vT+4)}, {vr(vT+6)}")
        elif c2 < 3:
            e(f"v_xad_u32 {vr(vOw+c2)}, {vr(vT+4)}, {32*c2}, {vr(vT+6)}")
        else:
            e(f"v_xor_b32 {vr(vT+1)}, 96, {vr(vT+4)}")
            e(f"v_add_u32 {vr(vOw+c2)}, {vr(vT+1)}, {vr(vT+6)}")
    e(f"v_lshrrev_b32 {vr(vT)}, 3, {vr(vLane)}")
    e(f"v_and_b32 {vr(vT+4)}, 7, {vr(vLane)}")
    e(f"v_mul_u32_u24 {vr(vT+5)}, 384, {vr(vT)}")
    e(f"v_add_u32 {vr(vT+5)}, {sr(sT1)}, {vr(vT+5)}")
    e(f"v_lshl_add_u32 {vr(vOg)}, {vr(vT+4)}, 4, {vr(vT+5)}")
    e(f"v_xor_b32 {vr(vT+4)}, {vr(vT+4)}, {vr(vT)}")
    e(f"v_lshl_add_u32 {vr(vOr)}, {vr(vT+4)}, 4, {vr(vT+5)}")
    e(f"s_mul_i32 {sr(sNeed)}, {sr(sW)}, 12")
    e(f"s_add_u32 {sr(sNeed)}, {sr(sNeed)}, 12")
    e(f"s_mov_b32 {sr(sCnt)}, 0")
    e(f"s_mov_b32 {sr(sIss)}, 0")

    pend = []

    def wait_for(tags):
        idx = max((pend.index(t_) for t_ in tags if t_ in pend), default=-1)
        if idx < 0:
            return
        after = len(pend) - idx - 1
        e(f"s_waitcnt lgkmcnt({min(15, after)})")
        del pend[:idx + 1]

    def acc(a):
        return vAcc + 4 * a

    def ef(ks):
        return vEf + 4 * ks

    def kf(a, ks):
        return vKf + (ks * 3 + a) * 4

    def phase1(isV):
        q = list(vq)
        for t in range(8):
            c(f"---- tile {t}")
            last = max(i for i, x in enumerate(q) if x == t)
            e(f"s_waitcnt vmcnt({len(q)-last-1})")
            e("s_barrier")
            if t == 0:
                stamp(1)
            if t >= 1:
                if t + 2 <= 7:
                    issue_e(t + 2, q)
                if t + 3 <= 7:
                    issue_k(t + 3, q)
            p = t % 4
            st, lo = p // 2, (p % 2) * 24576
            pend.clear()

            def reads(ks):
                e(f"ds_read_b128 {vr(ef(ks),4)}, {vr(vEa+(ks&1))} offset:{16384*(t%3)+8192*(ks>>1)}")
                pend.append(('e', ks))
                for a in range(3):
                    for hf in range(2):
                        e(f"ds_read_b64_tr_b16 {vr(kf(a,ks)+2*hf,2)}, {vr(vKa+3*st+a)} offset:{lo+6144*ks+768*hf}")
                        pend.append(('k', ks, a, hf))
            reads(0)
            reads(1)
            for ks in range(4):
                for a in range(3):
                    wait_for([('e', ks), ('k', ks, a, 0), ('k', ks, a, 1)])
                    cin = "0" if (t == 0 and ks == 0) else vr(acc(a), 4)
                    if isV:
                        e(f"v_mfma_f32_16x16x32_bf16 {vr(acc(a),4)}, {vr(ef(ks),4)}, {vr(kf(a,ks),4)}, {cin}")
                    else:
                        e(f"v_mfma_f32_16x16x32_bf16 {vr(acc(a),4)}, {vr(kf(a,ks),4)}, {vr(ef(ks),4)}, {cin}")
                if ks + 2 < 4:
                    reads(ks + 2)
        stamp(2)
        c("---- epilogue: pack, swap, store partial")
        e("s_nop 6")
        op = "v_permlane32_swap_b32" if isV else "v_permlane16_swap_b32"
        for a in range(3):
            e(f"v_cvt_pk_bf16_f32 {vr(vPk+2*a)}, {vr(acc(a))}, {vr(acc(a)+1)}")
            e(f"v_cvt_pk_bf16_f32 {vr(vPk+2*a+1)}, {vr(acc(a)+2)}, {vr(acc(a)+3)}")
            if a == 1:
                e("s_nop 1")
                e(f"{op} {vr(vPk)}, {vr(vPk+2)}")
                e(f"{op} {vr(vPk+1)}, {vr(vPk+3)}")
        e(f"buffer_store_dwordx4 {vr(vPk,4)}, {vr(vPo)}, {sr(S_P,4)}, {sr(sPo)} offen {opt.ppol}")
        e("s_nop 0")
        e(f"{op} {vr(vPk+4)}, {vr(vPk+6)}")
        e(f"{op} {vr(vPk+5)}, {vr(vPk+7)}")
        e(f"s_mov_b64 exec, {sr(sXm,2)}")
        e("s_nop 0")
        e(f"buffer_store_dwordx4 {vr(vPk+4,4)}, {vr(vPo)}, {sr(S_P,4)}, {sr(sPo+1)} offen {opt.ppol}")

    e(f"s_cmp_eq_u32 {sr(sT)}, 0")
    e("s_cbranch_scc0 L_P1_V")
    phase1(False)
    e("s_branch L_P1_DONE")
    g.label("L_P1_V")
    phase1(True)
    g.label("L_P1_DONE")

    e("s_mov_b64 exec, 1")
    e("s_barrier")
    e("s_waitcnt vmcnt(0)")
    stamp(3)
    if WF:
        e(f"buffer_store_dword {vr(vOne)}, {vr(vFo)}, {sr(S_F,4)}, 0 offen {opt.fpol}")
    else:
        e(f"ds_add_rtn_u32 {vr(vX)}, {vr(vSy)}, {vr(vOne)}")
        e("s_waitcnt lgkmcnt(0)")
        e(f"v_readfirstlane_b32 {sr(sT0)}, {vr(vX)}")
        e(f"s_cmp_lg_u32 {sr(sT0)}, 7")
        e("s_cbranch_scc1 L_NOPUB")
        e(f"buffer_store_dword {vr(vOne)}, {vr(vFo)}, {sr(S_F,4)}, 0 offen {opt.fpol}")
        g.label("L_NOPUB")
    e("s_mov_b64 exec, -1")

    vGK, vGV = 32, 56
    vGt, vGp = 80, 104

    def gd(j, r):
        return vGK + j * 12 + r * 4

    def issue_g(js):
        for j in js:
            lab = newlab("GI")
            e(f"s_bitcmp1_b32 {sr(sNew)}, {2*j}")
            e(f"s_cbranch_scc0 {lab}")
            e(f"s_mov_b32 {sr(sT1)}, {j*24576}")
            for r in range(3):
                e(f"buffer_load_dwordx4 {vr(gd(j,r),4)}, {vr(vG)}, {sr(S_P,4)}, {sr(sT1)} offen offset:{1024*r} sc1")
            g.label(lab)
        e(f"s_or_b32 {sr(sIss)}, {sr(sIss)}, {sr(sNew)}")

    g.label("L_GL")
    e(f"ds_read_b32 {vr(vX)}, {vr(vSy)} offset:8")
    e(f"s_add_u32 {sr(sCnt)}, {sr(sCnt)}, 1")
    e(f"s_cmp_gt_u32 {sr(sCnt)}, {SPIN*20}")
    e(f"s_cselect_b32 {sr(sT1)}, 0xff, 0")
    e("s_waitcnt lgkmcnt(0)")
    e(f"v_readfirstlane_b32 {sr(sT0)}, {vr(vX)}")
    e(f"s_or_b32 {sr(sT0)}, {sr(sT0)}, {sr(sT1)}")
    e(f"s_lshr_b32 {sr(sT0)}, {sr(sT0)}, {sr(sCG)}")
    e(f"s_and_b32 {sr(sT1)}, {sr(sT0)}, 5")
    e(f"s_and_b32 {sr(sT0)}, {sr(sT0)}, 0x55")
    e(f"s_cmp_eq_u32 {sr(sT1)}, 5")
    e(f"s_cselect_b32 {sr(sT0)}, {sr(sT0)}, {sr(sT1)}")
    e(f"s_andn2_b32 {sr(sNew)}, {sr(sT0)}, {sr(sIss)}")
    e("s_cbranch_scc1 L_GISSUE")
    if opt.psleep:
        e(f"s_sleep {opt.psleep}")
    e("s_branch L_GL")
    g.label("L_GISSUE")
    issue_g(range(4))
    e(f"s_and_b32 {sr(sT0)}, {sr(sIss)}, 5")
    e(f"s_cmp_lg_u32 {sr(sT0)}, 5")
    e("s_cbranch_scc1 L_GL")
    stamp(4)
    if opt.qpause:
        e("s_mov_b64 exec, 1")
        e(f"ds_add_u32 {vr(vSy)}, {vr(vOne)} offset:4")
        e("s_mov_b64 exec, -1")
    e(f"s_lshr_b32 {sr(sT0)}, {sr(sNew)}, 4")
    e(f"s_bcnt1_i32_b32 {sr(sT0)}, {sr(sT0)}")
    e(f"s_cmp_eq_u32 {sr(sT0)}, 2")
    e("s_cbranch_scc1 L_KW2")
    e(f"s_cmp_eq_u32 {sr(sT0)}, 1")
    e("s_cbranch_scc1 L_KW1")
    e("s_waitcnt vmcnt(0)")
    g.label("L_KW1")
    e("s_waitcnt vmcnt(3)")
    g.label("L_KW2")
    e("s_waitcnt vmcnt(6)")

    def gsum(j0, tmp, pkb, off):
        for r in range(3):
            for j in range(2):
                for d in range(4):
                    for hl in range(2):
                        a = tmp + 8 * r + 2 * d + hl
                        cin = "0" if j == 0 else vr(a)
                        e(f"v_dot2_f32_bf16 {vr(a)}, {vr(gd(j0+j,r)+d)}, {sr(sHI if hl else sLO)}, {cin}")
            if r >= 1:
                for d in range(4):
                    e(f"v_cvt_pk_bf16_f32 {vr(pkb+4*(r-1)+d)}, {vr(tmp+8*(r-1)+2*d)}, {vr(tmp+8*(r-1)+2*d+1)}")
                e(f"ds_write_b128 {vr(vGw)}, {vr(pkb+4*(r-1),4)} offset:{off+1024*(r-1)}")
        e("s_nop 1")
        for d in range(4):
            e(f"v_cvt_pk_bf16_f32 {vr(pkb+8+d)}, {vr(tmp+16+2*d)}, {vr(tmp+16+2*d+1)}")
        e(f"ds_write_b128 {vr(vGw)}, {vr(pkb+8,4)} offset:{off+2048}")

    gsum(0, vGt, vGp, 0)
    e("s_waitcnt lgkmcnt(0)")
    e("s_mov_b64 exec, 1")
    e(f"ds_add_u32 {vr(vSy)}, {vr(vOne)} offset:16")
    e("s_mov_b64 exec, -1")
    stamp(5)

    e(f"s_mov_b32 {sr(sCnt2)}, 0")
    g.label("L_W2")
    e(f"ds_read_b64 {vr(vX,2)}, {vr(vSy)} offset:8")
    e(f"ds_read_b32 {vr(vX-1)}, {vr(vSy)} offset:16")
    e(f"s_add_u32 {sr(sCnt2)}, {sr(sCnt2)}, 1")
    e("s_waitcnt lgkmcnt(0)")
    e(f"v_readfirstlane_b32 {sr(sT0)}, {vr(vX)}")
    e(f"v_readfirstlane_b32 {sr(sT2)}, {vr(vX+1)}")
    e(f"v_readfirstlane_b32 {sr(sT3)}, {vr(vX-1)}")
    e(f"s_lshr_b32 {sr(sT0)}, {sr(sT0)}, {sr(sCG)}")
    e(f"s_and_b32 {sr(sT0)}, {sr(sT0)}, 0x55")
    e(f"s_andn2_b32 {sr(sNew)}, {sr(sT0)}, {sr(sIss)}")
    e("s_cbranch_scc0 L_W2_NOV")
    issue_g([2, 3])
    g.label("L_W2_NOV")
    e(f"s_cmp_gt_u32 {sr(sCnt2)}, {SPIN*20}")
    e("s_cbranch_scc1 L_W2_DONE")
    if opt.vearly == 3:
        e(f"s_cmp_eq_u32 {sr(sIss)}, 0x55")
        e("s_cbranch_scc1 L_W2_VSUM")
    e(f"s_cmp_ge_u32 {sr(sT2)}, {sr(sNeed)}")
    e(f"s_cselect_b32 {sr(sT3)}, {sr(sT3)}, 0")
    e(f"s_cmp_eq_u32 {sr(sT3)}, 8")
    e("s_cbranch_scc1 L_W2_DONE")
    if opt.vearly:
        c("V partials complete while still waiting: sum them now")
        e(f"s_cmp_eq_u32 {sr(sIss)}, 0x55")
        e("s_cbranch_scc0 L_W2_SLEEP")
        if opt.vearly == 1:
            e(f"s_cmp_ge_u32 {sr(sT2)}, {sr(sNeed)}")
            e("s_cbranch_scc1 L_W2")
        g.label("L_W2_VSUM")
        e(f"s_mov_b32 {sr(sIss)}, 0xd5")
        e("s_waitcnt vmcnt(0)")
        gsum(2, vGt, vGp, 24576)
        e("s_waitcnt lgkmcnt(0)")
        e("s_mov_b64 exec, 1")
        e(f"ds_add_u32 {vr(vSy)}, {vr(vOne)} offset:20")
        e("s_mov_b64 exec, -1")
        e("s_branch L_W2")
        g.label("L_W2_SLEEP")
    e("s_sleep 1")
    e("s_branch L_W2")
    g.label("L_W2_DONE")
    stamp(6)
    stamp(7)

    vQf = 32
    NQ = 6
    vKP = 80
    vSa = 108
    vPf = 140
    NS = 7
    pend.clear()

    reads = []
    for s in range(12):
        reads.append(('q', s))
        reads.append(('kp', 2 * s))
        reads.append(('kp', 2 * s + 1))
    rp = [0]

    def do_read():
        tag = reads[rp[0]]
        rp[0] += 1
        if tag[0] == 'q':
            s = tag[1]
            e(f"ds_read_b128 {vr(vQf+4*(s%NQ),4)}, {vr(vQa+s)}")
        else:
            n = tag[1]
            e(f"ds_read_b128 {vr(vKP+4*(n%NS),4)}, {vr(vFr)} offset:{n*1024}")
        pend.append(tag)

    def can_issue(nd):
        if rp[0] >= len(reads):
            return False
        tag = reads[rp[0]]
        if tag[0] == 'q':
            return 2 * (tag[1] - NQ + 1) <= nd
        return tag[1] < nd + NS

    while can_issue(0):
        do_read()
    for n in range(24):
        s, rt = n // 2, n % 2
        wait_for([('q', s), ('kp', n)])
        a = vSa + 16 * rt
        cin = "0" if s == 0 else vr(a, 16)
        e(f"v_mfma_f32_32x32x16_bf16 {vr(a,16)}, {vr(vKP+4*(n%NS),4)}, {vr(vQf+4*(s%NQ),4)}, {cin}")
        while can_issue(n + 1):
            do_read()
    e(f"ds_read_b32 {vr(vX)}, {vr(vSy)} offset:8")
    e("s_nop 7")
    e("s_nop 1")
    c("softmax")
    vM, vM2, vSum, vSum2 = 156, 157, 158, 159
    e(f"v_max3_f32 {vr(vM)}, {vr(vSa)}, {vr(vSa+1)}, {vr(vSa+2)}")
    e(f"v_max3_f32 {vr(vM2)}, {vr(vSa+3)}, {vr(vSa+4)}, {vr(vSa+5)}")
    for i in range(6, 30, 4):
        e(f"v_max3_f32 {vr(vM)}, {vr(vM)}, {vr(vSa+i)}, {vr(vSa+i+1)}")
        e(f"v_max3_f32 {vr(vM2)}, {vr(vM2)}, {vr(vSa+i+2)}, {vr(vSa+i+3)}")
    e(f"v_max3_f32 {vr(vM)}, {vr(vM)}, {vr(vSa+30)}, {vr(vSa+31)}")
    e(f"v_max_f32 {vr(vM)}, {vr(vM)}, {vr(vM2)}")
    e(f"v_mov_b32 {vr(vM2)}, {vr(vM)}")
    c("late V loads")
    e("s_waitcnt lgkmcnt(0)")
    e(f"v_readfirstlane_b32 {sr(sT0)}, {vr(vX)}")
    e(f"v_permlane32_swap_b32 {vr(vM)}, {vr(vM2)}")
    e(f"s_lshr_b32 {sr(sT0)}, {sr(sT0)}, {sr(sCG)}")
    e(f"s_and_b32 {sr(sT0)}, {sr(sT0)}, 0x55")
    e(f"s_andn2_b32 {sr(sNew)}, {sr(sT0)}, {sr(sIss)}")
    e("s_cbranch_scc0 L_SM_NOV")
    issue_g([2, 3])
    g.label("L_SM_NOV")
    e(f"v_max_f32 {vr(vM)}, {vr(vM)}, {vr(vM2)}")
    e(f"v_mul_f32 {vr(vM)}, {sr(sC)}, {vr(vM)}")
    for i in range(32):
        e(f"v_fma_f32 {vr(vSa+i)}, {vr(vSa+i)}, {sr(sC)}, -{vr(vM)}")
    for i in range(32):
        e(f"v_exp_f32 {vr(vSa+i)}, {vr(vSa+i)}")
    e("s_nop 0")
    e(f"v_add_f32 {vr(vSum)}, {vr(vSa)}, {vr(vSa+1)}")
    e(f"v_add_f32 {vr(vSum2)}, {vr(vSa+2)}, {vr(vSa+3)}")
    for i in range(4, 32, 2):
        e(f"v_add_f32 {vr(vSum)}, {vr(vSum)}, {vr(vSa+i)}")
        e(f"v_add_f32 {vr(vSum2)}, {vr(vSum2)}, {vr(vSa+i+1)}")
    e(f"v_add_f32 {vr(vSum)}, {vr(vSum)}, {vr(vSum2)}")
    e(f"v_mov_b32 {vr(vSum2)}, {vr(vSum)}")
    e("s_nop 1")
    e(f"v_permlane32_swap_b32 {vr(vSum)}, {vr(vSum2)}")
    e("s_nop 1")
    e(f"v_add_f32 {vr(vSum)}, {vr(vSum)}, {vr(vSum2)}")
    e(f"v_rcp_f32 {vr(vSum)}, {vr(vSum)}")
    e("s_nop 0")
    for i in range(32):
        e(f"v_mul_f32 {vr(vSa+i)}, {vr(vSa+i)}, {vr(vSum)}")
    for i in range(16):
        e(f"v_cvt_pk_bf16_f32 {vr(vPf+i)}, {vr(vSa+2*i)}, {vr(vSa+2*i+1)}")
    stamp(8)
    c("V sum (unless already done)")
    e(f"s_mov_b32 {sr(sCnt2)}, 0")
    e(f"s_cmp_eq_u32 {sr(sIss)}, 0xd5")
    e("s_cbranch_scc1 L_W3")
    g.label("L_VL")
    e(f"s_cmp_eq_u32 {sr(sIss)}, 0x55")
    e("s_cbranch_scc1 L_VSUM")
    e(f"ds_read_b32 {vr(vX)}, {vr(vSy)} offset:8")
    e(f"s_add_u32 {sr(sCnt2)}, {sr(sCnt2)}, 1")
    e(f"s_cmp_gt_u32 {sr(sCnt2)}, {SPIN*20}")
    e(f"s_cselect_b32 {sr(sT1)}, 0xff, 0")
    e("s_waitcnt lgkmcnt(0)")
    e(f"v_readfirstlane_b32 {sr(sT0)}, {vr(vX)}")
    e(f"s_or_b32 {sr(sT0)}, {sr(sT0)}, {sr(sT1)}")
    e(f"s_lshr_b32 {sr(sT0)}, {sr(sT0)}, {sr(sCG)}")
    e(f"s_and_b32 {sr(sT0)}, {sr(sT0)}, 0x55")
    e(f"s_andn2_b32 {sr(sNew)}, {sr(sT0)}, {sr(sIss)}")
    issue_g([2, 3])
    e("s_branch L_VL")
    g.label("L_VSUM")
    e("s_waitcnt vmcnt(0)")
    gsum(2, vGt, 108, 24576)
    e("s_waitcnt lgkmcnt(0)")
    e("s_mov_b64 exec, 1")
    e(f"ds_add_u32 {vr(vSy)}, {vr(vOne)} offset:20")
    e("s_mov_b64 exec, -1")
    e(f"s_mov_b32 {sr(sCnt2)}, 0")
    g.label("L_W3")
    e(f"ds_read_b32 {vr(vX)}, {vr(vSy)} offset:20")
    e(f"s_add_u32 {sr(sCnt2)}, {sr(sCnt2)}, 1")
    e("s_waitcnt lgkmcnt(0)")
    e(f"v_readfirstlane_b32 {sr(sT0)}, {vr(vX)}")
    e(f"s_cmp_eq_u32 {sr(sT0)}, 8")
    e("s_cbranch_scc1 L_W3_DONE")
    e(f"s_cmp_gt_u32 {sr(sCnt2)}, {SPIN*20}")
    e("s_cbranch_scc0 L_W3")
    g.label("L_W3_DONE")
    stamp(9)

    vVP = 32
    vOa = 60
    vOa2 = 92
    vOpS = [124, 16]
    seq = [(jp, s, jj) for jp in range(3) for s in range(4) for jj in range(2)]
    VPB = 24576
    pend.clear()

    def vp_read(n):
        jp, s, jj = seq[n]
        e(f"ds_read_b128 {vr(vVP+4*(n%NS),4)}, {vr(vFr)} offset:{VPB+((2*jp+jj)*4+s)*1024}")
        pend.append(('vp', n))
    stp = opt.stpol
    for n in range(NS):
        vp_read(n)
    issued = NS

    def epilogue(jp):
        ob = vOa if jp % 2 == 0 else vOa2
        vOp = vOpS[jp % 2]
        for jj in range(2):
            a = ob + 16 * jj
            for a2 in range(2):
                pk = vOp + (jj * 2 + a2) * 4
                for d in range(4):
                    e(f"v_cvt_pk_bf16_f32 {vr(pk+d)}, {vr(a+8*a2+2*d)}, {vr(a+8*a2+2*d+1)}")
                e(f"ds_write_b128 {vr(vOw+2*jj+a2)}, {vr(pk,4)} offset:{128*jp}")
                pend.append(('w', jp, jj, a2))
        for i in range(4):
            e(f"ds_read_b128 {vr(vOp+4*i,4)}, {vr(vOr)} offset:{128*jp+3072*i}")
            pend.append(('r', jp, i))

    def stores(jp):
        vOp = vOpS[jp % 2]
        for i in range(4):
            wait_for([('r', jp, i)])
            e(f"buffer_store_dwordx4 {vr(vOp+4*i,4)}, {vr(vOg)}, {sr(S_O,4)}, {sr(sI+i)} offen offset:{128*jp} {stp}")

    for n in range(24):
        jp, s, jj = seq[n]
        wait_for([('vp', n)])
        ob = vOa if jp % 2 == 0 else vOa2
        a = ob + 16 * jj
        cin = "0" if s == 0 else vr(a, 16)
        e(f"v_mfma_f32_32x32x16_bf16 {vr(a,16)}, {vr(vVP+4*(n%NS),4)}, {vr(vPf+4*s,4)}, {cin}")
        if issued < 24:
            vp_read(issued)
            issued += 1
        if n % 8 == 1 and jp >= 1:
            e("s_nop 7")
            e("s_nop 1")
            epilogue(jp - 1)
        if n % 8 == 4 and jp >= 1:
            stores(jp - 1)
    e("s_nop 7")
    e("s_nop 3")
    epilogue(2)
    stores(2)
    stamp(10)
    if TS:
        e("s_waitcnt vmcnt(0)")
        stamp(11)
        e("s_branch L_TS")
    else:
        e("s_endpgm")

    g.label("L_HELP")
    e(f"v_mov_b32 {vr(vSy)}, {SYNC}")
    e(f"v_mov_b32 {vr(vOne)}, 1")
    e(f"s_mov_b32 {sr(sCnt)}, 0")
    e(f"s_cmp_eq_u32 {sr(sW)}, 8")
    e("s_cbranch_scc0 L_POLLER")
    c("---- Q loader")
    vQd = 32
    e(f"v_lshlrev_b32 {vr(vT+2)}, 2, {vr(vLane)}")
    e(f"v_add_u32 {vr(vT+2)}, {SYNC}, {vr(vT+2)}")
    e(f"v_mov_b32 {vr(vT+3)}, 0")
    e(f"ds_write_b32 {vr(vT+2)}, {vr(vT+3)}")
    e(f"v_lshrrev_b32 {vr(vT)}, 3, {vr(vLane)}")
    e(f"v_and_b32 {vr(vT+4)}, 7, {vr(vLane)}")
    e(f"v_lshrrev_b32 {vr(vT+2)}, 4, {vr(vLane)}")
    e(f"v_xor_b32 {vr(vT+3)}, {vr(vT+2)}, {vr(vT+4)}")
    e(f"v_lshlrev_b32 {vr(vT+3)}, 4, {vr(vT+3)}")
    e(f"v_lshl_add_u32 {vr(vQd)}, {vr(vT)}, 7, {vr(vT+3)}")
    e(f"v_xor_b32 {vr(vQd+1)}, 64, {vr(vQd)}")
    e(f"s_mul_i32 {sr(sT1)}, {sr(sSub)}, 98304")
    e(f"s_add_u32 {sr(sT1)}, {sr(sT1)}, {sr(sT0)}")
    e(f"s_mov_b32 {sr(S_Q+2)}, 98304")
    e(f"s_mov_b32 {sr(S_Q+3)}, 0x00020000")
    e("s_waitcnt lgkmcnt(0)")
    e(f"s_add_u32 {sr(S_Q)}, s4, {sr(sT1)}")
    e(f"s_addc_u32 {sr(S_Q+1)}, s5, 0")
    for i in range(NPB):
        e("s_barrier")

    def q_instr(i):
        if i % 4 == 0:
            e(f"s_mov_b32 {sr(sT3)}, {1024*i}")
            e(f"s_mov_b32 m0, {sr(sT3)}")
            e("s_nop 0")
        e(f"buffer_load_dwordx4 {vr(vQd+(i&1))}, {sr(S_Q,4)}, {sr(sT3)} offen offset:{1024*(i&3)} nt lds")

    qs = [int(x) for x in opt.qsched.split(",")]
    nq = 0
    for t in range(8):
        e("s_barrier")
        if t == 0:
            stamp(1)
        if t >= 5:
            lim = min(nq + qs[t - 5], 24 * (t - 4))
            while nq < lim:
                q_instr(nq)
                nq += 1
    stamp(2)
    e("s_barrier")
    stamp(3)
    stamp(6)
    stamp(7)
    e("s_waitcnt lgkmcnt(0)")
    QD = min(opt.qdepth, 63)
    posted = [0]
    tail = [0]

    def post(kb):
        kb = kb // 12 * 12
        if kb > posted[0]:
            e(f"v_mov_b32 {vr(vX)}, {kb}")
            e(f"{'ds_max_u32' if tail[0] else 'ds_write_b32'} {vr(vSy)}, {vr(vX)} offset:12")
            posted[0] = kb
    QG = opt.qgran
    landed = 0
    i = nq
    if opt.qpause:
        assert nq % 4 == 0 and QD % 4 == 0
        sQi = 12

        def q4():
            e(f"s_mov_b32 m0, {sr(sQi)}")
            e("s_nop 0")
            for k in range(4):
                e(f"buffer_load_dwordx4 {vr(vQd+(k&1))}, {sr(S_Q,4)}, {sr(sQi)} offen offset:{1024*k} nt lds")
            e(f"s_add_u32 {sr(sQi)}, {sr(sQi)}, 4096")
        e(f"s_mov_b32 {sr(sQi)}, {1024*nq}")
        g.label("L_QA")
        e(f"ds_read_b32 {vr(vX)}, {vr(vSy)} offset:8")
        e(f"s_lshr_b32 {sr(sT1)}, {sr(sQi)}, 10")
        e(f"s_sub_u32 {sr(sT1)}, {sr(sT1)}, {QD-4}")
        e(f"s_max_i32 {sr(sT1)}, {sr(sT1)}, 0")
        e(f"v_mov_b32 {vr(vX+1)}, {sr(sT1)}")
        e(f"s_waitcnt vmcnt({QD-4}) lgkmcnt(0)")
        e(f"ds_write_b32 {vr(vSy)}, {vr(vX+1)} offset:12")
        e(f"v_readfirstlane_b32 {sr(sT0)}, {vr(vX)}")
        e(f"s_and_b32 {sr(sT0)}, {sr(sT0)}, {opt.qpm}")
        e(f"s_bcnt1_i32_b32 {sr(sT0)}, {sr(sT0)}")
        e(f"s_cmp_ge_u32 {sr(sT0)}, {opt.qpause}")
        e("s_cbranch_scc1 L_QB")
        q4()
        e(f"s_cmp_lt_u32 {sr(sQi)}, 98304")
        e("s_cbranch_scc1 L_QA")
        e("s_branch L_QT")
        g.label("L_QB")
        stamp(6)
        g.label("L_QB2")
        e(f"ds_read_b32 {vr(vX)}, {vr(vSy)} offset:4")
        e(f"s_add_u32 {sr(sCnt)}, {sr(sCnt)}, 1")
        e("s_waitcnt lgkmcnt(0)")
        e(f"v_readfirstlane_b32 {sr(sT0)}, {vr(vX)}")
        e(f"s_cmp_ge_u32 {sr(sT0)}, {opt.qres}")
        e("s_cbranch_scc1 L_QC0")
        e(f"s_cmp_gt_u32 {sr(sCnt)}, {SPIN*20}")
        e("s_cbranch_scc0 L_QB2")
        g.label("L_QC0")
        stamp(7)
        if TS:
            e(f"s_lshr_b32 {sr(sCnt)}, {sr(sQi)}, 10")
        g.label("L_QC")
        if opt.qd2 < 63:
            e(f"s_lshr_b32 {sr(sT1)}, {sr(sQi)}, 10")
            e(f"s_sub_u32 {sr(sT1)}, {sr(sT1)}, {opt.qd2-4}")
            e(f"s_max_i32 {sr(sT1)}, {sr(sT1)}, 0")
            e(f"v_max_u32 {vr(vX+1)}, {sr(sT1)}, {vr(vX+1)}")
            e(f"s_waitcnt vmcnt({opt.qd2-4})")
            e(f"ds_write_b32 {vr(vSy)}, {vr(vX+1)} offset:12")
        q4()
        e(f"s_cmp_lt_u32 {sr(sQi)}, 98304")
        e("s_cbranch_scc1 L_QC")
        g.label("L_QT")
        i = 96
    while i < 96:
        n = min(QG, 96 - i)
        need = i + n - QD
        if need > landed:
            for kb in range(12, 97, 12):
                if landed < kb < need:
                    e(f"s_waitcnt vmcnt({min(63, i-kb)})")
                    post(kb)
            e(f"s_waitcnt vmcnt({min(63, i-need)})")
            landed = need
            post(landed)
        for k in range(n):
            q_instr(i + k)
        i += n
    stamp(4)
    tail[0] = 1
    e("s_mov_b64 exec, 1")
    for kb in range(36 if opt.qpause else 12, 97, 12):
        if kb > posted[0]:
            e(f"s_waitcnt vmcnt({min(63, 96-kb)})")
            post(kb)
    stamp(5)
    if TS:
        for i in range(8 if opt.qpause else 6, 12):
            stamp(i)
        e("s_branch L_TS")
    else:
        e("s_waitcnt lgkmcnt(0)")
        e("s_endpgm")

    c("---- poller")
    g.label("L_POLLER")
    vFl, vDb, vRd = 32, 33, 34
    e(f"v_lshlrev_b32 {vr(vFl)}, 2, {vr(vLane)}")
    e(f"v_mov_b32 {vr(vT+3)}, 0")
    e(f"s_lshl_b32 {sr(sT1)}, {sr(sH)}, 2")
    e(f"s_add_u32 {sr(sT1)}, {sr(sT1)}, 128")
    e(f"v_mov_b32 {vr(vDb)}, {sr(sT1)}")
    e(f"s_mov_b32 {sr(S_D+2)}, 256")
    e(f"s_mov_b32 {sr(S_D+3)}, 0x00020000")
    e("s_waitcnt lgkmcnt(0)")
    flag_srd()
    e(f"s_mov_b32 {sr(S_D)}, s16")
    e(f"s_mov_b32 {sr(S_D+1)}, s17")
    e(f"s_cmp_lg_u32 {sr(sSub)}, 0")
    e("s_cbranch_scc1 L_NOCLR")
    e(f"buffer_store_dword {vr(vT+3)}, {vr(vFl)}, {sr(S_F,4)}, 0 offen sc1")
    g.label("L_NOCLR")
    for i in range(NPB):
        e("s_barrier")
    e("s_mov_b64 exec, 1")
    e(f"s_cmp_lg_u32 {sr(sSub)}, 0")
    e("s_cbranch_scc1 L_NOSIG")
    e("s_waitcnt vmcnt(0)")
    e(f"buffer_store_dword {vr(vOne)}, {vr(vDb)}, {sr(S_D,4)}, 0 offen sc1")
    g.label("L_NOSIG")
    for t in range(8):
        e("s_barrier")
        if t == 0:
            stamp(1)
        if t == 4:
            e(f"buffer_load_dword {vr(vRd)}, {vr(vDb)}, {sr(S_D,4)}, 0 offen sc1")
    g.label("L_CHK")
    e("s_waitcnt vmcnt(0)")
    e(f"v_readfirstlane_b32 {sr(sT0)}, {vr(vRd)}")
    e(f"s_cmp_eq_u32 {sr(sT0)}, 1")
    e("s_cbranch_scc1 L_CHK_DONE")
    e(f"s_add_u32 {sr(sCnt)}, {sr(sCnt)}, 1")
    e(f"s_cmp_gt_u32 {sr(sCnt)}, {SPIN}")
    e("s_cbranch_scc1 L_CHK_DONE")
    e("s_sleep 4")
    e(f"buffer_load_dword {vr(vRd)}, {vr(vDb)}, {sr(S_D,4)}, 0 offen sc1")
    e("s_branch L_CHK")
    g.label("L_CHK_DONE")
    stamp(2)
    e("s_barrier")
    stamp(3)
    e(f"s_mov_b32 {sr(sCnt)}, 0")
    e(f"s_mov_b32 {sr(sMask)}, 0")
    e(f"s_mov_b64 exec, {-1 if WF else 0xff}")
    if opt.pdelay:
        c("first poll once this workgroup's own stores have drained")
        g.label("L_PD")
        e(f"ds_read_b32 {vr(vX)}, {vr(vSy)}")
        e(f"s_add_u32 {sr(sCnt)}, {sr(sCnt)}, 1")
        e("s_waitcnt lgkmcnt(0)")
        e(f"v_readfirstlane_b32 {sr(sT0)}, {vr(vX)}")
        e(f"s_cmp_ge_u32 {sr(sT0)}, {opt.pdelay}")
        e("s_cbranch_scc1 L_PD_DONE")
        e(f"s_cmp_gt_u32 {sr(sCnt)}, {SPIN*20}")
        e("s_cbranch_scc0 L_PD")
        g.label("L_PD_DONE")
        e(f"s_mov_b32 {sr(sCnt)}, 0")
    g.label("L_POLL")
    if opt.spoll:
        e(f"s_load_dwordx8 s[20:27], {sr(S_F,2)}, 0 glc")
    else:
        e(f"buffer_load_dword {vr(vRd)}, {vr(vFl)}, {sr(S_F,4)}, 0 offen sc1")
    e(f"s_add_u32 {sr(sCnt)}, {sr(sCnt)}, 1")
    e(f"s_cmp_gt_u32 {sr(sCnt)}, {SPIN}")
    e(f"s_cselect_b32 {sr(sT1)}, 0xff, {sr(sMask) if opt.spoll else 0}")
    if opt.spoll:
        c("device-scope vector poll as well once the fast polls have not finished the job")
        e(f"s_cmp_lt_u32 {sr(sCnt)}, {opt.vfall}")
        e("s_cbranch_scc1 L_POLL_S")
        e(f"buffer_load_dword {vr(vRd)}, {vr(vFl)}, {sr(S_F,4)}, 0 offen sc1")
        e("s_waitcnt vmcnt(0)")
        e(f"v_cmp_eq_u32 vcc, 1, {vr(vRd)}")
        e("s_nop 1")
        e(f"s_or_b32 {sr(sT1)}, {sr(sT1)}, vcc_lo")
        g.label("L_POLL_S")
        e("s_waitcnt lgkmcnt(0)")
        for j in range(8):
            e(f"s_cmp_eq_u32 s{20+j}, 1")
            e(f"s_cselect_b32 s{20+j}, {1<<j}, 0")
            e(f"s_or_b32 {sr(sT1)}, {sr(sT1)}, s{20+j}")
        e(f"s_mov_b32 {sr(sT0)}, {sr(sT1)}")
    else:
        e("s_waitcnt vmcnt(0)")
        e(f"v_cmp_eq_u32 vcc, 1, {vr(vRd)}")
    if opt.spoll:
        pass
    elif WF:
        c("byte-wise AND reduction of the 64 wave flags")
        e(f"s_lshr_b64 {sr(sT2+1,2) if False else 's[12:13]'}, vcc, 4")
        e("s_and_b64 s[12:13], s[12:13], vcc")
        e("s_lshr_b64 s[14:15], s[12:13], 2")
        e("s_and_b64 s[12:13], s[12:13], s[14:15]")
        e("s_lshr_b64 s[14:15], s[12:13], 1")
        e("s_and_b64 s[12:13], s[12:13], s[14:15]")
        for r_ in (12, 13):
            e(f"s_and_b32 s{r_}, s{r_}, 0x01010101")
            e(f"s_mul_i32 s{r_}, s{r_}, 0x01020408")
            e(f"s_bfe_u32 s{r_}, s{r_}, 0x40018")
        e("s_lshl4_add_u32 s12, s13, s12")
        e(f"s_or_b32 {sr(sT0)}, {sr(sT1)}, s12")
    else:
        e("s_nop 1")
        e(f"s_or_b32 {sr(sT0)}, {sr(sT1)}, vcc_lo")
    e(f"s_cmp_eq_u32 {sr(sT0)}, {sr(sMask)}")
    e("s_cbranch_scc1 L_POLL_SAME")
    e(f"v_mov_b32 {vr(vX)}, {sr(sT0)}")
    e(f"ds_write_b32 {vr(vSy)}, {vr(vX)} offset:8")
    if TS:
        e(f"s_cmp_lg_u32 {sr(sMask)}, 0")
        e("s_cbranch_scc1 L_POLL_NOTS")
        stamp(4)
        g.label("L_POLL_NOTS")
    e(f"s_mov_b32 {sr(sMask)}, {sr(sT0)}")
    e(f"s_cmp_eq_u32 {sr(sMask)}, 0xff")
    e("s_cbranch_scc1 L_POLL_DONE")
    g.label("L_POLL_SAME")
    if opt.psleep:
        e(f"s_sleep {opt.psleep}")
    e("s_branch L_POLL")
    g.label("L_POLL_DONE")
    if TS:
        for i in range(5, 12):
            stamp(i)
        g.label("L_TS")
        e("s_waitcnt lgkmcnt(0)")
        c("records: waves 0, 7, 8, 9")
        e(f"s_sub_u32 s3, {sr(sW)}, 6")
        e(f"s_cmp_eq_u32 {sr(sW)}, 0")
        e("s_cselect_b32 s3, 0, s3")
        e("s_cselect_b32 s12, 7, s44")
        e("s_cmp_lt_u32 s12, 7")
        e("s_cbranch_scc1 L_END")
        e(f"s_add_u32 {sr(S_P)}, s18, 0x1000000")
        e(f"s_addc_u32 {sr(S_P+1)}, s19, 0")
        e(f"s_mov_b32 {sr(S_P+2)}, 0x20000")
        e(f"s_mov_b32 {sr(S_P+3)}, 0x00020000")
        e("s_mov_b64 exec, 1")
        e(f"s_lshl_b32 {sr(sT0)}, s3, 7")
        e("s_lshl_b32 s3, s2, 9")
        e(f"s_add_u32 s3, s3, {sr(sT0)}")
        e(f"v_mov_b32 {vr(vT)}, s3")
        e(f"s_mov_b32 {sr(sTS+24)}, 0")
        e(f"s_mov_b32 {sr(sTS+25)}, {sr(sCnt)}")
        for i in range(13):
            e(f"v_mov_b32 {vr(vT+2)}, {sr(sTS+2*i)}")
            e(f"v_mov_b32 {vr(vT+3)}, {sr(sTS+2*i+1)}")
            e(f"buffer_store_dwordx2 {vr(vT+2,2)}, {vr(vT)}, {sr(S_P,4)}, 0 offen offset:{8*i}")
            e("s_nop 1")
    else:
        e("s_waitcnt lgkmcnt(0)")
    g.label("L_END")
    e("s_endpgm")

    return HEADER.format(n=NAME) + "\n".join(g.lines) + FOOTER.format(n=NAME, vgpr=160, acc=160)


if __name__ == "__main__":
    ap = argparse.ArgumentParser()
    ap.add_argument("-o", default=f"cdna_kernels/{NAME}.s")
    ap.add_argument("--ts", type=int, default=0)
    ap.add_argument("--qsched", default="24,0,0")
    ap.add_argument("--qdepth", type=int, default=24)
    ap.add_argument("--qgran", type=int, default=1)
    ap.add_argument("--pbar", type=int, default=1)
    ap.add_argument("--psleep", type=int, default=1)
    ap.add_argument("--pdelay", type=int, default=0)
    ap.add_argument("--wflag", type=int, default=0)
    ap.add_argument("--vearly", type=int, default=1)
    ap.add_argument("--kpol", default="nt")
    ap.add_argument("--qpause", type=int, default=0)
    ap.add_argument("--qpm", type=lambda x: int(x, 0), default=0xff)
    ap.add_argument("--qres", type=int, default=8)
    ap.add_argument("--qd2", type=int, default=63)
    ap.add_argument("--ppol", default="sc1")
    ap.add_argument("--fpol", default="sc1")
    ap.add_argument("--spoll", type=int, default=0)
    ap.add_argument("--stpol", default="sc1")
    ap.add_argument("--vfall", type=int, default=12)
    opt = ap.parse_args()
    open(opt.o, "w").write(gen(opt))
```

```python
import sys, math, argparse, struct

NAME = "standalone__low_rank_proj_linformer__prompt"

HEADER = """; Kernarg layout for this problem (64 bytes, ptrs only, base s[0:1]):
; @launch grid=(256,1,1) block=(640,1,1) lds=163840
.amdgcn_target "amdgcn-amd-amdhsa--gfx950"
.text
.globl {n}_kernel
.p2align 8
.type {n}_kernel,@function
{n}_kernel:
"""

FOOTER = """
.section .rodata,"a"
.p2align 6
.amdhsa_kernel {n}_kernel
  .amdhsa_next_free_vgpr {vgpr}
  .amdhsa_next_free_sgpr 102
  .amdhsa_accum_offset {acc}
  .amdhsa_group_segment_fixed_size 0
  .amdhsa_kernarg_size 64
  .amdhsa_user_sgpr_count 2
  .amdhsa_user_sgpr_kernarg_segment_ptr 1
  .amdhsa_system_sgpr_workgroup_id_x 1
.end_amdhsa_kernel
"""


class G:
    def __init__(self):
        self.lines = []

    def e(self, s):
        self.lines.append("    " + s)

    def c(self, s):
        self.lines.append("    ; " + s)

    def label(self, s):
        self.lines.append(s + ":")


def vr(a, n=1):
    return f"v{a}" if n == 1 else f"v[{a}:{a+n-1}]"


def sr(a, n=1):
    return f"s{a}" if n == 1 else f"s[{a}:{a+n-1}]"


def gen(opt):
    g = G()
    e, c = g.e, g.c
    TS = opt.ts
    SPIN = 400000
    WF = opt.wflag
    assert not (WF and opt.pdelay)

    S_KV, S_E, S_Q, S_O, S_P, S_D = 20, 24, 28, 32, 36, 40
    sW, sH, sSub, sT, sNH = 44, 45, 46, 47, 48
    sT0, sT1, sT2, sT3 = 49, 50, 51, 52
    sRT, sCG = 53, 54
    sLO, sHI = 55, 56
    sC = 57
    sI = 58
    sM0K, sM0E = 62, 63
    sCnt = 64
    sCnt2 = 65
    sTS = 66
    sDH = 92
    sNeed = 93
    sXm = 94
    S_F = 96
    sPo = 4
    sIss, sNew, sMask, sMask2 = 7, 8, 9, 10

    vLane = 1
    vSy, vOne, vG, vGw, vFr, vOr, vOg = 2, 3, 4, 5, 6, 7, 8
    vOw = 9
    vX = 14
    vQa = 16
    vK = 32
    vE = 35
    vEa = 36
    vKa = 38
    vPo = 44
    vFo = 45
    vAcc = 48
    vEf = 60
    vKf = 76
    vPk = 124
    vT = 132

    IMG = 98304
    SYNC = 147456
    uid = [0]

    def newlab(p):
        uid[0] += 1
        return f"L_{p}_{uid[0]}"

    def stamp(i):
        if TS == 2 and 4 <= i <= 9:
            return
        if TS:
            e(f"s_memrealtime {sr(sTS+2*i,2)}")

    def stamp2(i):
        if TS == 2:
            e(f"s_memrealtime {sr(sTS+2*i,2)}")

    e("s_cmp_ge_u32 s2, 256")
    e("s_cbranch_scc1 L_END")
    stamp(0)
    e("s_load_dwordx16 s[4:19], s[0:1], 0")
    e(f"v_and_b32 {vr(vLane)}, 63, v0")
    e(f"v_lshrrev_b32 {vr(vT)}, 6, v0")
    e(f"s_and_b32 {sr(sH)}, s2, 31")
    e(f"v_readfirstlane_b32 {sr(sW)}, {vr(vT)}")
    e(f"s_lshr_b32 {sr(sSub)}, s2, 5")
    e(f"v_mul_u32_u24 {vr(vT+2)}, 171, {vr(vLane)}")
    e(f"v_lshlrev_b32 {vr(vT+1)}, 4, {vr(vLane)}")
    e(f"s_mul_i32 {sr(sT0)}, {sr(sH)}, 786432")
    e(f"s_cmp_ge_u32 {sr(sW)}, 8")
    e("s_cbranch_scc1 L_HELP")
    e(f"s_movk_i32 {sr(sT3)}, 192")
    e(f"s_lshr_b32 {sr(sT)}, {sr(sSub)}, 2")
    e(f"s_bfe_u32 {sr(sNH)}, {sr(sSub)}, 0x10001")
    e(f"s_and_b32 {sr(sDH)}, {sr(sSub)}, 1")
    e(f"v_lshrrev_b32 {vr(vT+3)}, 11, {vr(vT+2)}")
    e(f"v_mad_u32_u24 {vr(vK)}, {vr(vT+3)}, {sr(sT3)}, {vr(vT+1)}")
    e(f"v_add_u32 {vr(vT+3)}, 10944, {vr(vT+2)}")
    e(f"v_lshrrev_b32 {vr(vT+3)}, 11, {vr(vT+3)}")
    e(f"v_and_b32 {vr(vT+4)}, 32, {vr(vLane)}")
    e(f"v_xor_b32 {vr(vT+4)}, {vr(vT+4)}, {vr(vT+1)}")
    e(f"v_mad_u32_u24 {vr(vK+1)}, {vr(vT+3)}, {sr(sT3)}, {vr(vT+4)}")
    e(f"v_add_u32 {vr(vT+3)}, 21888, {vr(vT+2)}")
    e(f"v_lshrrev_b32 {vr(vT+3)}, 11, {vr(vT+3)}")
    e(f"v_xor_b32 {vr(vT+4)}, 32, {vr(vT+1)}")
    e(f"v_mad_u32_u24 {vr(vK+2)}, {vr(vT+3)}, {sr(sT3)}, {vr(vT+4)}")
    c("K/V source offset: h*786432 + nh*393216 + dh*192 + w*6144")
    e(f"s_mul_i32 {sr(sM0K)}, {sr(sW)}, 3072")
    e(f"s_mul_i32 {sr(sT2)}, {sr(sDH)}, 192")
    e(f"s_lshl1_add_u32 {sr(sT2)}, {sr(sM0K)}, {sr(sT2)}")
    e(f"s_mul_i32 {sr(sT1)}, {sr(sNH)}, 393216")
    e(f"s_add_u32 {sr(sT1)}, {sr(sT1)}, {sr(sT0)}")
    e(f"s_add_u32 {sr(sT1)}, {sr(sT1)}, {sr(sT2)}")
    e(f"s_sub_u32 {sr(S_KV+2)}, 393216, {sr(sT2)}")
    e(f"s_mov_b32 {sr(S_KV+3)}, 0x00020000")
    c("E pattern")
    e(f"v_lshrrev_b32 {vr(vT)}, 3, {vr(vLane)}")
    e(f"s_lshl_b32 {sr(sT2)}, {sr(sW)}, 3")
    e(f"v_add_u32 {vr(vT+2)}, {sr(sT2)}, {vr(vT)}")
    e(f"v_bfe_u32 {vr(vT+3)}, {vr(vT+2)}, 1, 3")
    e(f"v_and_b32 {vr(vT+4)}, 7, {vr(vLane)}")
    e(f"v_xor_b32 {vr(vT+3)}, {vr(vT+3)}, {vr(vT+4)}")
    e(f"v_lshlrev_b32 {vr(vT+3)}, 4, {vr(vT+3)}")
    e(f"v_lshl_add_u32 {vr(vE)}, {vr(vT+2)}, 12, {vr(vT+3)}")
    e(f"s_lshl_b32 {sr(sM0E)}, {sr(sW)}, 10")
    e(f"s_add_u32 {sr(sM0E)}, {sr(sM0E)}, {IMG}")
    e(f"s_lshl_b32 {sr(sT2)}, {sr(sNH)}, 11")
    e(f"s_sub_u32 {sr(S_E+2)}, 262144, {sr(sT2)}")
    e(f"s_mov_b32 {sr(S_E+3)}, 0x00020000")
    stamp2(4)
    e(f"s_cmp_eq_u32 {sr(sT)}, 0")
    e("s_waitcnt lgkmcnt(0)")
    stamp2(5)
    e(f"s_cselect_b32 {sr(S_KV)}, s6, s8")
    e(f"s_cselect_b32 {sr(S_KV+1)}, s7, s9")
    e(f"s_cselect_b32 {sr(S_E)}, s10, s12")
    e(f"s_cselect_b32 {sr(S_E+1)}, s11, s13")
    e(f"s_add_u32 {sr(S_KV)}, {sr(S_KV)}, {sr(sT1)}")
    e(f"s_addc_u32 {sr(S_KV+1)}, {sr(S_KV+1)}, 0")
    e(f"s_add_u32 {sr(S_E)}, {sr(S_E)}, {sr(sT2)}")
    e(f"s_addc_u32 {sr(S_E+1)}, {sr(S_E+1)}, 0")

    vq = []

    def issue_k(t, q):
        e(f"s_add_u32 m0, {sr(sM0K)}, {24576*(t%4)}")
        e(f"s_mov_b32 {sr(sT3)}, {49152*t}")
        for i in range(3):
            e(f"buffer_load_dwordx4 {vr(vK+i)}, {sr(S_KV,4)}, {sr(sT3)} offen offset:{1024*i} {opt.kpol} lds")
        q.extend([t] * 3)

    def issue_e(t, q):
        for st in range(2):
            e(f"s_add_u32 m0, {sr(sM0E)}, {16384*(t%3)+8192*st}")
            e(f"s_movk_i32 {sr(sT3)}, {256*t+128*st}")
            e(f"buffer_load_dwordx4 {vr(vE)}, {sr(S_E,4)}, {sr(sT3)} offen lds")
        q.extend([t] * 2)

    NPB = (2 if opt.k3late else 3) if opt.pbar else 0

    def initial(ts_):
        for t in ts_:
            if t == 3 and opt.k3late:
                continue
            issue_k(t, vq)
            if t < 3:
                issue_e(t, vq)
                if t == 0:
                    stamp2(6)
                if t < NPB:
                    e("s_barrier")
    initial(range(opt.smid))
    if opt.smid == 4:
        stamp2(7)

    c("remaining SRDs")
    e(f"s_and_b32 {sr(sRT)}, {sr(sW)}, 3")
    e(f"s_lshr_b32 {sr(sCG)}, {sr(sW)}, 2")
    e(f"s_mul_i32 {sr(sT1)}, {sr(sSub)}, 98304")
    e(f"s_add_u32 {sr(sT1)}, {sr(sT1)}, {sr(sT0)}")
    e(f"s_add_u32 {sr(S_O)}, s14, {sr(sT1)}")
    e(f"s_addc_u32 {sr(S_O+1)}, s15, 0")
    e(f"s_mov_b32 {sr(S_O+2)}, 98304")
    e(f"s_mov_b32 {sr(S_O+3)}, 0x00020000")
    e(f"s_mul_i32 {sr(sT1)}, {sr(sH)}, 98304")
    e(f"s_add_u32 {sr(S_P)}, s18, {sr(sT1)}")
    e(f"s_addc_u32 {sr(S_P+1)}, s19, 0")
    e(f"s_mov_b32 {sr(S_P+2)}, 98304")
    e(f"s_mov_b32 {sr(S_P+3)}, 0x00020000")

    def flag_srd():
        e(f"s_mul_i32 {sr(sT1)}, {sr(sH)}, 4352")
        e(f"s_add_u32 {sr(sT1)}, {sr(sT1)}, 0x800000")
        e(f"s_add_u32 {sr(S_F)}, s18, {sr(sT1)}")
        e(f"s_addc_u32 {sr(S_F+1)}, s19, 0")
        e(f"s_mov_b32 {sr(S_F+2)}, {256 if WF else 32}")
        e(f"s_mov_b32 {sr(S_F+3)}, 0x00020000")
    flag_srd()
    e(f"s_mov_b32 {sr(sLO)}, 0x00003f80")
    e(f"s_mov_b32 {sr(sHI)}, 0x3f800000")
    cst = math.log2(math.e) / math.sqrt(192.0)
    e(f"s_mov_b32 {sr(sC)}, 0x{struct.unpack('<I', struct.pack('<f', cst))[0]:08x}")
    for i in range(4):
        e(f"s_mov_b32 {sr(sI+i)}, {3072*i}")
    e(f"v_mov_b32 {vr(vSy)}, {SYNC}")
    e(f"v_mov_b32 {vr(vOne)}, 1")
    if WF:
        e(f"s_lshl_b32 {sr(sT1)}, {sr(sSub)}, 3")
        e(f"s_add_u32 {sr(sT1)}, {sr(sT1)}, {sr(sW)}")
        e(f"s_lshl_b32 {sr(sT1)}, {sr(sT1)}, 2")
    else:
        e(f"s_lshl_b32 {sr(sT1)}, {sr(sSub)}, 2")
    e(f"v_mov_b32 {vr(vFo)}, {sr(sT1)}")

    c("E frag addrs")
    e(f"v_lshrrev_b32 {vr(vT+2)}, 4, {vr(vLane)}")
    e(f"v_and_b32 {vr(vT+3)}, 15, {vr(vLane)}")
    e(f"v_lshrrev_b32 {vr(vT+5)}, 1, {vr(vT+3)}")
    e(f"v_xor_b32 {vr(vT+5)}, {vr(vT+5)}, {vr(vT+2)}")
    e(f"v_lshlrev_b32 {vr(vT+5)}, 4, {vr(vT+5)}")
    e(f"v_lshl_add_u32 {vr(vT+5)}, {vr(vT+3)}, 7, {vr(vT+5)}")
    e(f"s_lshl_b32 {sr(sT1)}, {sr(sRT)}, 11")
    e(f"s_add_u32 {sr(sT1)}, {sr(sT1)}, {IMG}")
    e(f"v_add_u32 {vr(vEa)}, {sr(sT1)}, {vr(vT+5)}")
    e(f"v_xor_b32 {vr(vEa+1)}, 64, {vr(vEa)}")

    c("K frag addrs: column tiles (4cg, 4cg+1, 2+cg)")
    e(f"v_bfe_u32 {vr(vT+5)}, {vr(vLane)}, 2, 2")
    e(f"v_lshl_add_u32 {vr(vT+5)}, {vr(vT+2)}, 3, {vr(vT+5)}")
    e(f"v_mul_u32_u24 {vr(vT+5)}, 192, {vr(vT+5)}")
    e(f"v_and_b32 {vr(vT+6)}, 3, {vr(vLane)}")
    e(f"v_lshl_add_u32 {vr(vT+5)}, {vr(vT+6)}, 3, {vr(vT+5)}")
    e(f"v_bfe_u32 {vr(vT+6)}, {vr(vLane)}, 4, 1")
    e(f"v_lshlrev_b32 {vr(vT+6)}, 5, {vr(vT+6)}")
    e(f"s_lshl_b32 {sr(sT1)}, {sr(sCG)}, 7")
    e(f"v_xad_u32 {vr(vKa)}, {vr(vT+6)}, {sr(sT1)}, {vr(vT+5)}")
    e(f"v_xor_b32 {vr(vKa+1)}, 32, {vr(vKa)}")
    e(f"s_lshl_b32 {sr(sT1)}, {sr(sCG)}, 5")
    e(f"s_add_u32 {sr(sT1)}, {sr(sT1)}, 64")
    e(f"v_xad_u32 {vr(vKa+2)}, {vr(vT+6)}, {sr(sT1)}, {vr(vT+5)}")
    for a in range(3):
        e(f"v_add_u32 {vr(vKa+3+a)}, 49152, {vr(vKa+a)}")

    c("partial store voffset + soffsets")
    e(f"s_mul_i32 {sr(sT0)}, {sr(sSub)}, 12288")
    e(f"s_lshl_b32 {sr(sT2)}, {sr(sCG)}, 13")
    e(f"s_cmp_eq_u32 {sr(sT)}, 0")
    e("s_cbranch_scc0 L_PO_V")
    e(f"v_lshlrev_b32 {vr(vT+5)}, 4, {vr(vT+3)}")
    e(f"v_lshl_add_u32 {vr(vT+5)}, {vr(vT+6)}, 6, {vr(vT+5)}")
    e(f"v_lshrrev_b32 {vr(vT+6)}, 5, {vr(vLane)}")
    e(f"v_lshl_add_u32 {vr(vPo)}, {vr(vT+6)}, 9, {vr(vT+5)}")
    e(f"s_lshr_b32 {sr(sT1)}, {sr(sRT)}, 1")
    e(f"s_lshl_b32 {sr(sT1)}, {sr(sT1)}, 10")
    e(f"s_add_u32 {sr(sT0)}, {sr(sT0)}, {sr(sT1)}")
    e(f"s_and_b32 {sr(sT1)}, {sr(sRT)}, 1")
    e(f"s_lshl_b32 {sr(sT1)}, {sr(sT1)}, 8")
    e(f"s_add_u32 {sr(sT0)}, {sr(sT0)}, {sr(sT1)}")
    e(f"s_add_u32 {sr(sPo)}, {sr(sT0)}, {sr(sT2)}")
    e(f"s_lshl_b32 {sr(sT1)}, {sr(sCG)}, 11")
    e(f"s_add_u32 {sr(sT1)}, {sr(sT1)}, 4096")
    e(f"s_add_u32 {sr(sPo+1)}, {sr(sT0)}, {sr(sT1)}")
    e(f"s_mov_b32 {sr(sXm)}, 0xffff")
    e(f"s_mov_b32 {sr(sXm+1)}, 0xffff")
    e("s_branch L_PO_DONE")
    g.label("L_PO_V")
    e(f"v_and_b32 {vr(vT+5)}, 3, {vr(vLane)}")
    e(f"v_bfe_u32 {vr(vT+4)}, {vr(vLane)}, 2, 1")
    e(f"v_lshl_or_b32 {vr(vT+5)}, {vr(vT+4)}, 3, {vr(vT+5)}")
    e(f"v_bfe_u32 {vr(vT+4)}, {vr(vLane)}, 3, 1")
    e(f"v_lshl_or_b32 {vr(vT+5)}, {vr(vT+4)}, 2, {vr(vT+5)}")
    e(f"v_or_b32 {vr(vT+5)}, {vr(vT+5)}, {vr(vT+6)}")
    e(f"v_lshlrev_b32 {vr(vT+5)}, 4, {vr(vT+5)}")
    e(f"v_lshrrev_b32 {vr(vT+6)}, 5, {vr(vLane)}")
    e(f"v_lshl_add_u32 {vr(vPo)}, {vr(vT+6)}, 8, {vr(vT+5)}")
    e(f"s_lshl_b32 {sr(sT1)}, {sr(sRT)}, 10")
    e(f"s_add_u32 {sr(sT0)}, {sr(sT0)}, {sr(sT1)}")
    e(f"s_add_u32 {sr(sPo)}, {sr(sT0)}, {sr(sT2)}")
    e(f"s_lshl_b32 {sr(sT1)}, {sr(sCG)}, 8")
    e(f"s_add_u32 {sr(sT1)}, {sr(sT1)}, 4096")
    e(f"s_add_u32 {sr(sPo+1)}, {sr(sT0)}, {sr(sT1)}")
    e(f"s_mov_b32 {sr(sXm)}, -1")
    e(f"s_mov_b32 {sr(sXm+1)}, 0")
    g.label("L_PO_DONE")

    c("gather / frag addresses: 3 KiB contiguous per wave and partial image")
    e(f"v_lshlrev_b32 {vr(vFr)}, 4, {vr(vLane)}")
    e(f"v_add_u32 {vr(vG)}, {sr(sM0K)}, {vr(vFr)}")
    e(f"v_add_u32 {vr(vFr)}, {IMG}, {vr(vFr)}")
    e(f"v_add_u32 {vr(vGw)}, {sr(sM0K)}, {vr(vFr)}")

    c("Q frag addrs")
    e(f"s_mul_i32 {sr(sT1)}, {sr(sW)}, 12288")
    e(f"v_and_b32 {vr(vT+3)}, 31, {vr(vLane)}")
    e(f"v_lshrrev_b32 {vr(vT+2)}, 5, {vr(vLane)}")
    e(f"v_mul_u32_u24 {vr(vT+5)}, 3, {vr(vT+3)}")
    for L in range(3):
        e(f"v_add_u32 {vr(vT+6)}, {L}, {vr(vT+5)}")
        e(f"v_bfe_u32 {vr(vT+4)}, {vr(vT+6)}, 1, 3")
        e(f"v_xor_b32 {vr(vT+4)}, {vr(vT+4)}, {vr(vT+2)}")
        e(f"v_lshlrev_b32 {vr(vT+4)}, 4, {vr(vT+4)}")
        e(f"v_lshl_add_u32 {vr(vT+6)}, {vr(vT+6)}, 7, {sr(sT1)}")
        for s4 in range(4):
            if s4 == 0:
                e(f"v_add_u32 {vr(vQa+4*L)}, {vr(vT+4)}, {vr(vT+6)}")
            elif s4 < 3:
                e(f"v_xad_u32 {vr(vQa+4*L+s4)}, {vr(vT+4)}, {32*s4}, {vr(vT+6)}")
            else:
                e(f"v_xor_b32 {vr(vT+1)}, 96, {vr(vT+4)}")
                e(f"v_add_u32 {vr(vQa+4*L+s4)}, {vr(vT+1)}, {vr(vT+6)}")
    c("O staging addrs")
    e(f"v_and_b32 {vr(vT+4)}, 7, {vr(vT+3)}")
    e(f"v_xor_b32 {vr(vT+4)}, {vr(vT+4)}, {vr(vT+2)}")
    e(f"v_lshlrev_b32 {vr(vT+4)}, 4, {vr(vT+4)}")
    e(f"v_lshl_add_u32 {vr(vT+6)}, {vr(vT+5)}, 7, {sr(sT1)}")
    for c2 in range(4):
        if c2 == 0:
            e(f"v_add_u32 {vr(vOw)}, {vr(vT+4)}, {vr(vT+6)}")
        elif c2 < 3:
            e(f"v_xad_u32 {vr(vOw+c2)}, {vr(vT+4)}, {32*c2}, {vr(vT+6)}")
        else:
            e(f"v_xor_b32 {vr(vT+1)}, 96, {vr(vT+4)}")
            e(f"v_add_u32 {vr(vOw+c2)}, {vr(vT+1)}, {vr(vT+6)}")
    e(f"v_lshrrev_b32 {vr(vT)}, 3, {vr(vLane)}")
    e(f"v_and_b32 {vr(vT+4)}, 7, {vr(vLane)}")
    e(f"v_mul_u32_u24 {vr(vT+5)}, 384, {vr(vT)}")
    e(f"v_add_u32 {vr(vT+5)}, {sr(sT1)}, {vr(vT+5)}")
    e(f"v_lshl_add_u32 {vr(vOg)}, {vr(vT+4)}, 4, {vr(vT+5)}")
    e(f"v_xor_b32 {vr(vT+4)}, {vr(vT+4)}, {vr(vT)}")
    e(f"v_lshl_add_u32 {vr(vOr)}, {vr(vT+4)}, 4, {vr(vT+5)}")
    e(f"s_mul_i32 {sr(sNeed)}, {sr(sW)}, 12")
    e(f"s_add_u32 {sr(sNeed)}, {sr(sNeed)}, 12")
    e(f"s_mov_b32 {sr(sCnt)}, 0")
    e(f"s_mov_b32 {sr(sIss)}, 0")
    if opt.smid < 4:
        initial(range(opt.smid, 4))
        stamp2(7)

    pend = []

    def wait_for(tags):
        idx = max((pend.index(t_) for t_ in tags if t_ in pend), default=-1)
        if idx < 0:
            return
        after = len(pend) - idx - 1
        e(f"s_waitcnt lgkmcnt({min(15, after)})")
        del pend[:idx + 1]

    def acc(a):
        return vAcc + 4 * a

    def ef(ks):
        return vEf + 4 * ks

    def kf(a, ks):
        return vKf + (ks * 3 + a) * 4

    def phase1(isV):
        q = list(vq)
        for t in range(8):
            c(f"---- tile {t}")
            last = max(i for i, x in enumerate(q) if x == t)
            if t == 0:
                stamp2(8)
            e(f"s_waitcnt vmcnt({len(q)-last-1})")
            if t == 0:
                stamp2(9)
            e("s_barrier")
            if t == 0:
                stamp(1)
            if t >= 1:
                if t + 2 <= 7:
                    issue_e(t + 2, q)
                if t + 3 <= 7:
                    issue_k(t + 3, q)
            p = t % 4
            st, lo = p // 2, (p % 2) * 24576
            pend.clear()

            def reads(ks):
                e(f"ds_read_b128 {vr(ef(ks),4)}, {vr(vEa+(ks&1))} offset:{16384*(t%3)+8192*(ks>>1)}")
                pend.append(('e', ks))
                for a in range(3):
                    for hf in range(2):
                        e(f"ds_read_b64_tr_b16 {vr(kf(a,ks)+2*hf,2)}, {vr(vKa+3*st+a)} offset:{lo+6144*ks+768*hf}")
                        pend.append(('k', ks, a, hf))
            reads(0)
            reads(1)
            for ks in range(4):
                for a in range(3):
                    wait_for([('e', ks), ('k', ks, a, 0), ('k', ks, a, 1)])
                    cin = "0" if (t == 0 and ks == 0) else vr(acc(a), 4)
                    if isV:
                        e(f"v_mfma_f32_16x16x32_bf16 {vr(acc(a),4)}, {vr(ef(ks),4)}, {vr(kf(a,ks),4)}, {cin}")
                    else:
                        e(f"v_mfma_f32_16x16x32_bf16 {vr(acc(a),4)}, {vr(kf(a,ks),4)}, {vr(ef(ks),4)}, {cin}")
                if ks + 2 < 4:
                    reads(ks + 2)
                if t == 0 and opt.k3late and ks == opt.k3late - 1:
                    issue_k(3, q)
        stamp(2)
        c("---- epilogue: pack, swap, store partial")
        e("s_nop 6")
        op = "v_permlane32_swap_b32" if isV else "v_permlane16_swap_b32"
        for a in range(3):
            e(f"v_cvt_pk_bf16_f32 {vr(vPk+2*a)}, {vr(acc(a))}, {vr(acc(a)+1)}")
            e(f"v_cvt_pk_bf16_f32 {vr(vPk+2*a+1)}, {vr(acc(a)+2)}, {vr(acc(a)+3)}")
            if a == 1:
                e("s_nop 1")
                e(f"{op} {vr(vPk)}, {vr(vPk+2)}")
                e(f"{op} {vr(vPk+1)}, {vr(vPk+3)}")
        e(f"buffer_store_dwordx4 {vr(vPk,4)}, {vr(vPo)}, {sr(S_P,4)}, {sr(sPo)} offen {opt.ppol}")
        e("s_nop 0")
        e(f"{op} {vr(vPk+4)}, {vr(vPk+6)}")
        e(f"{op} {vr(vPk+5)}, {vr(vPk+7)}")
        e(f"s_mov_b64 exec, {sr(sXm,2)}")
        e("s_nop 0")
        e(f"buffer_store_dwordx4 {vr(vPk+4,4)}, {vr(vPo)}, {sr(S_P,4)}, {sr(sPo+1)} offen {opt.ppol}")

    e(f"s_cmp_eq_u32 {sr(sT)}, 0")
    e("s_cbranch_scc0 L_P1_V")
    phase1(False)
    e("s_branch L_P1_DONE")
    g.label("L_P1_V")
    phase1(True)
    g.label("L_P1_DONE")

    e("s_mov_b64 exec, 1")
    e("s_barrier")
    e("s_waitcnt vmcnt(0)")
    stamp(3)
    if WF:
        e(f"buffer_store_dword {vr(vOne)}, {vr(vFo)}, {sr(S_F,4)}, 0 offen {opt.fpol}")
    else:
        e(f"ds_add_rtn_u32 {vr(vX)}, {vr(vSy)}, {vr(vOne)}")
        e("s_waitcnt lgkmcnt(0)")
        e(f"v_readfirstlane_b32 {sr(sT0)}, {vr(vX)}")
        e(f"s_cmp_lg_u32 {sr(sT0)}, 7")
        e("s_cbranch_scc1 L_NOPUB")
        e(f"buffer_store_dword {vr(vOne)}, {vr(vFo)}, {sr(S_F,4)}, 0 offen {opt.fpol}")
        g.label("L_NOPUB")
    e("s_mov_b64 exec, -1")

    vGK, vGV = 32, 56
    vGt, vGp = 80, 104

    def gd(j, r):
        return vGK + j * 12 + r * 4

    def issue_g(js):
        for j in js:
            lab = newlab("GI")
            e(f"s_bitcmp1_b32 {sr(sNew)}, {2*j}")
            e(f"s_cbranch_scc0 {lab}")
            e(f"s_mov_b32 {sr(sT1)}, {j*24576}")
            for r in range(3):
                e(f"buffer_load_dwordx4 {vr(gd(j,r),4)}, {vr(vG)}, {sr(S_P,4)}, {sr(sT1)} offen offset:{1024*r} sc1")
            g.label(lab)
        e(f"s_or_b32 {sr(sIss)}, {sr(sIss)}, {sr(sNew)}")

    g.label("L_GL")
    e(f"ds_read_b32 {vr(vX)}, {vr(vSy)} offset:8")
    e(f"s_add_u32 {sr(sCnt)}, {sr(sCnt)}, 1")
    e(f"s_cmp_gt_u32 {sr(sCnt)}, {SPIN*20}")
    e(f"s_cselect_b32 {sr(sT1)}, 0xff, 0")
    e("s_waitcnt lgkmcnt(0)")
    e(f"v_readfirstlane_b32 {sr(sT0)}, {vr(vX)}")
    e(f"s_or_b32 {sr(sT0)}, {sr(sT0)}, {sr(sT1)}")
    e(f"s_lshr_b32 {sr(sT0)}, {sr(sT0)}, {sr(sCG)}")
    e(f"s_and_b32 {sr(sT1)}, {sr(sT0)}, 5")
    e(f"s_and_b32 {sr(sT0)}, {sr(sT0)}, 0x55")
    e(f"s_cmp_eq_u32 {sr(sT1)}, 5")
    e(f"s_cselect_b32 {sr(sT0)}, {sr(sT0)}, {sr(sT1)}")
    e(f"s_andn2_b32 {sr(sNew)}, {sr(sT0)}, {sr(sIss)}")
    e("s_cbranch_scc1 L_GISSUE")
    if opt.psleep:
        e(f"s_sleep {opt.psleep}")
    e("s_branch L_GL")
    g.label("L_GISSUE")
    issue_g(range(4))
    e(f"s_and_b32 {sr(sT0)}, {sr(sIss)}, 5")
    e(f"s_cmp_lg_u32 {sr(sT0)}, 5")
    e("s_cbranch_scc1 L_GL")
    stamp(4)
    if opt.qpause:
        e("s_mov_b64 exec, 1")
        e(f"ds_add_u32 {vr(vSy)}, {vr(vOne)} offset:4")
        e("s_mov_b64 exec, -1")
    e(f"s_lshr_b32 {sr(sT0)}, {sr(sNew)}, 4")
    e(f"s_bcnt1_i32_b32 {sr(sT0)}, {sr(sT0)}")
    e(f"s_cmp_eq_u32 {sr(sT0)}, 2")
    e("s_cbranch_scc1 L_KW2")
    e(f"s_cmp_eq_u32 {sr(sT0)}, 1")
    e("s_cbranch_scc1 L_KW1")
    e("s_waitcnt vmcnt(0)")
    g.label("L_KW1")
    e("s_waitcnt vmcnt(3)")
    g.label("L_KW2")
    e("s_waitcnt vmcnt(6)")

    def gsum(j0, tmp, pkb, off):
        for r in range(3):
            for j in range(2):
                for d in range(4):
                    for hl in range(2):
                        a = tmp + 8 * r + 2 * d + hl
                        cin = "0" if j == 0 else vr(a)
                        e(f"v_dot2_f32_bf16 {vr(a)}, {vr(gd(j0+j,r)+d)}, {sr(sHI if hl else sLO)}, {cin}")
            if r >= 1:
                for d in range(4):
                    e(f"v_cvt_pk_bf16_f32 {vr(pkb+4*(r-1)+d)}, {vr(tmp+8*(r-1)+2*d)}, {vr(tmp+8*(r-1)+2*d+1)}")
                e(f"ds_write_b128 {vr(vGw)}, {vr(pkb+4*(r-1),4)} offset:{off+1024*(r-1)}")
        e("s_nop 1")
        for d in range(4):
            e(f"v_cvt_pk_bf16_f32 {vr(pkb+8+d)}, {vr(tmp+16+2*d)}, {vr(tmp+16+2*d+1)}")
        e(f"ds_write_b128 {vr(vGw)}, {vr(pkb+8,4)} offset:{off+2048}")

    gsum(0, vGt, vGp, 0)
    e("s_waitcnt lgkmcnt(0)")
    e("s_mov_b64 exec, 1")
    e(f"ds_add_u32 {vr(vSy)}, {vr(vOne)} offset:16")
    e("s_mov_b64 exec, -1")
    stamp(5)

    e(f"s_mov_b32 {sr(sCnt2)}, 0")
    g.label("L_W2")
    e(f"ds_read_b64 {vr(vX,2)}, {vr(vSy)} offset:8")
    e(f"ds_read_b32 {vr(vX-1)}, {vr(vSy)} offset:16")
    e(f"s_add_u32 {sr(sCnt2)}, {sr(sCnt2)}, 1")
    e("s_waitcnt lgkmcnt(0)")
    e(f"v_readfirstlane_b32 {sr(sT0)}, {vr(vX)}")
    e(f"v_readfirstlane_b32 {sr(sT2)}, {vr(vX+1)}")
    e(f"v_readfirstlane_b32 {sr(sT3)}, {vr(vX-1)}")
    e(f"s_lshr_b32 {sr(sT0)}, {sr(sT0)}, {sr(sCG)}")
    e(f"s_and_b32 {sr(sT0)}, {sr(sT0)}, 0x55")
    e(f"s_andn2_b32 {sr(sNew)}, {sr(sT0)}, {sr(sIss)}")
    e("s_cbranch_scc0 L_W2_NOV")
    issue_g([2, 3])
    g.label("L_W2_NOV")
    e(f"s_cmp_gt_u32 {sr(sCnt2)}, {SPIN*20}")
    e("s_cbranch_scc1 L_W2_DONE")
    if opt.vearly == 3:
        e(f"s_cmp_eq_u32 {sr(sIss)}, 0x55")
        e("s_cbranch_scc1 L_W2_VSUM")
    e(f"s_cmp_ge_u32 {sr(sT2)}, {sr(sNeed)}")
    e(f"s_cselect_b32 {sr(sT3)}, {sr(sT3)}, 0")
    e(f"s_cmp_eq_u32 {sr(sT3)}, 8")
    e("s_cbranch_scc1 L_W2_DONE")
    if opt.vearly:
        c("V partials complete while still waiting: sum them now")
        e(f"s_cmp_eq_u32 {sr(sIss)}, 0x55")
        e("s_cbranch_scc0 L_W2_SLEEP")
        if opt.vearly == 1:
            e(f"s_cmp_ge_u32 {sr(sT2)}, {sr(sNeed)}")
            e("s_cbranch_scc1 L_W2")
        g.label("L_W2_VSUM")
        e(f"s_mov_b32 {sr(sIss)}, 0xd5")
        e("s_waitcnt vmcnt(0)")
        gsum(2, vGt, vGp, 24576)
        e("s_waitcnt lgkmcnt(0)")
        e("s_mov_b64 exec, 1")
        e(f"ds_add_u32 {vr(vSy)}, {vr(vOne)} offset:20")
        e("s_mov_b64 exec, -1")
        e("s_branch L_W2")
        g.label("L_W2_SLEEP")
    e("s_sleep 1")
    e("s_branch L_W2")
    g.label("L_W2_DONE")
    stamp(6)
    stamp(7)

    vQf = 32
    NQ = 6
    vKP = 80
    vSa = 108
    vPf = 140
    NS = 7
    pend.clear()

    reads = []
    for s in range(12):
        reads.append(('q', s))
        reads.append(('kp', 2 * s))
        reads.append(('kp', 2 * s + 1))
    rp = [0]

    def do_read():
        tag = reads[rp[0]]
        rp[0] += 1
        if tag[0] == 'q':
            s = tag[1]
            e(f"ds_read_b128 {vr(vQf+4*(s%NQ),4)}, {vr(vQa+s)}")
        else:
            n = tag[1]
            e(f"ds_read_b128 {vr(vKP+4*(n%NS),4)}, {vr(vFr)} offset:{n*1024}")
        pend.append(tag)

    def can_issue(nd):
        if rp[0] >= len(reads):
            return False
        tag = reads[rp[0]]
        if tag[0] == 'q':
            return 2 * (tag[1] - NQ + 1) <= nd
        return tag[1] < nd + NS

    while can_issue(0):
        do_read()
    for n in range(24):
        s, rt = n // 2, n % 2
        wait_for([('q', s), ('kp', n)])
        a = vSa + 16 * rt
        cin = "0" if s == 0 else vr(a, 16)
        e(f"v_mfma_f32_32x32x16_bf16 {vr(a,16)}, {vr(vKP+4*(n%NS),4)}, {vr(vQf+4*(s%NQ),4)}, {cin}")
        while can_issue(n + 1):
            do_read()
    e(f"ds_read_b32 {vr(vX)}, {vr(vSy)} offset:8")
    e("s_nop 7")
    e("s_nop 1")
    c("softmax")
    vM, vM2, vSum, vSum2 = 156, 157, 158, 159
    e(f"v_max3_f32 {vr(vM)}, {vr(vSa)}, {vr(vSa+1)}, {vr(vSa+2)}")
    e(f"v_max3_f32 {vr(vM2)}, {vr(vSa+3)}, {vr(vSa+4)}, {vr(vSa+5)}")
    for i in range(6, 30, 4):
        e(f"v_max3_f32 {vr(vM)}, {vr(vM)}, {vr(vSa+i)}, {vr(vSa+i+1)}")
        e(f"v_max3_f32 {vr(vM2)}, {vr(vM2)}, {vr(vSa+i+2)}, {vr(vSa+i+3)}")
    e(f"v_max3_f32 {vr(vM)}, {vr(vM)}, {vr(vSa+30)}, {vr(vSa+31)}")
    e(f"v_max_f32 {vr(vM)}, {vr(vM)}, {vr(vM2)}")
    e(f"v_mov_b32 {vr(vM2)}, {vr(vM)}")
    c("late V loads")
    e("s_waitcnt lgkmcnt(0)")
    e(f"v_readfirstlane_b32 {sr(sT0)}, {vr(vX)}")
    e(f"v_permlane32_swap_b32 {vr(vM)}, {vr(vM2)}")
    e(f"s_lshr_b32 {sr(sT0)}, {sr(sT0)}, {sr(sCG)}")
    e(f"s_and_b32 {sr(sT0)}, {sr(sT0)}, 0x55")
    e(f"s_andn2_b32 {sr(sNew)}, {sr(sT0)}, {sr(sIss)}")
    e("s_cbranch_scc0 L_SM_NOV")
    issue_g([2, 3])
    g.label("L_SM_NOV")
    e(f"v_max_f32 {vr(vM)}, {vr(vM)}, {vr(vM2)}")
    e(f"v_mul_f32 {vr(vM)}, {sr(sC)}, {vr(vM)}")
    for i in range(32):
        e(f"v_fma_f32 {vr(vSa+i)}, {vr(vSa+i)}, {sr(sC)}, -{vr(vM)}")
    for i in range(32):
        e(f"v_exp_f32 {vr(vSa+i)}, {vr(vSa+i)}")
    e("s_nop 0")
    e(f"v_add_f32 {vr(vSum)}, {vr(vSa)}, {vr(vSa+1)}")
    e(f"v_add_f32 {vr(vSum2)}, {vr(vSa+2)}, {vr(vSa+3)}")
    for i in range(4, 32, 2):
        e(f"v_add_f32 {vr(vSum)}, {vr(vSum)}, {vr(vSa+i)}")
        e(f"v_add_f32 {vr(vSum2)}, {vr(vSum2)}, {vr(vSa+i+1)}")
    e(f"v_add_f32 {vr(vSum)}, {vr(vSum)}, {vr(vSum2)}")
    e(f"v_mov_b32 {vr(vSum2)}, {vr(vSum)}")
    e("s_nop 1")
    e(f"v_permlane32_swap_b32 {vr(vSum)}, {vr(vSum2)}")
    e("s_nop 1")
    e(f"v_add_f32 {vr(vSum)}, {vr(vSum)}, {vr(vSum2)}")
    e(f"v_rcp_f32 {vr(vSum)}, {vr(vSum)}")
    e("s_nop 0")
    for i in range(32):
        e(f"v_mul_f32 {vr(vSa+i)}, {vr(vSa+i)}, {vr(vSum)}")
    for i in range(16):
        e(f"v_cvt_pk_bf16_f32 {vr(vPf+i)}, {vr(vSa+2*i)}, {vr(vSa+2*i+1)}")
    stamp(8)
    c("V sum (unless already done)")
    e(f"s_mov_b32 {sr(sCnt2)}, 0")
    e(f"s_cmp_eq_u32 {sr(sIss)}, 0xd5")
    e("s_cbranch_scc1 L_W3")
    g.label("L_VL")
    e(f"s_cmp_eq_u32 {sr(sIss)}, 0x55")
    e("s_cbranch_scc1 L_VSUM")
    e(f"ds_read_b32 {vr(vX)}, {vr(vSy)} offset:8")
    e(f"s_add_u32 {sr(sCnt2)}, {sr(sCnt2)}, 1")
    e(f"s_cmp_gt_u32 {sr(sCnt2)}, {SPIN*20}")
    e(f"s_cselect_b32 {sr(sT1)}, 0xff, 0")
    e("s_waitcnt lgkmcnt(0)")
    e(f"v_readfirstlane_b32 {sr(sT0)}, {vr(vX)}")
    e(f"s_or_b32 {sr(sT0)}, {sr(sT0)}, {sr(sT1)}")
    e(f"s_lshr_b32 {sr(sT0)}, {sr(sT0)}, {sr(sCG)}")
    e(f"s_and_b32 {sr(sT0)}, {sr(sT0)}, 0x55")
    e(f"s_andn2_b32 {sr(sNew)}, {sr(sT0)}, {sr(sIss)}")
    issue_g([2, 3])
    e("s_branch L_VL")
    g.label("L_VSUM")
    e("s_waitcnt vmcnt(0)")
    gsum(2, vGt, 108, 24576)
    e("s_waitcnt lgkmcnt(0)")
    e("s_mov_b64 exec, 1")
    e(f"ds_add_u32 {vr(vSy)}, {vr(vOne)} offset:20")
    e("s_mov_b64 exec, -1")
    e(f"s_mov_b32 {sr(sCnt2)}, 0")
    g.label("L_W3")
    e(f"ds_read_b32 {vr(vX)}, {vr(vSy)} offset:20")
    e(f"s_add_u32 {sr(sCnt2)}, {sr(sCnt2)}, 1")
    e("s_waitcnt lgkmcnt(0)")
    e(f"v_readfirstlane_b32 {sr(sT0)}, {vr(vX)}")
    e(f"s_cmp_eq_u32 {sr(sT0)}, 8")
    e("s_cbranch_scc1 L_W3_DONE")
    e(f"s_cmp_gt_u32 {sr(sCnt2)}, {SPIN*20}")
    e("s_cbranch_scc0 L_W3")
    g.label("L_W3_DONE")
    stamp(9)

    vVP = 32
    vOa = 60
    vOa2 = 92
    vOpS = [124, 16]
    seq = [(jp, s, jj) for jp in range(3) for s in range(4) for jj in range(2)]
    VPB = 24576
    pend.clear()

    def vp_read(n):
        jp, s, jj = seq[n]
        e(f"ds_read_b128 {vr(vVP+4*(n%NS),4)}, {vr(vFr)} offset:{VPB+((2*jp+jj)*4+s)*1024}")
        pend.append(('vp', n))
    stp = opt.stpol
    for n in range(NS):
        vp_read(n)
    issued = NS

    def epilogue(jp):
        ob = vOa if jp % 2 == 0 else vOa2
        vOp = vOpS[jp % 2]
        for jj in range(2):
            a = ob + 16 * jj
            for a2 in range(2):
                pk = vOp + (jj * 2 + a2) * 4
                for d in range(4):
                    e(f"v_cvt_pk_bf16_f32 {vr(pk+d)}, {vr(a+8*a2+2*d)}, {vr(a+8*a2+2*d+1)}")
                e(f"ds_write_b128 {vr(vOw+2*jj+a2)}, {vr(pk,4)} offset:{128*jp}")
                pend.append(('w', jp, jj, a2))
        for i in range(4):
            e(f"ds_read_b128 {vr(vOp+4*i,4)}, {vr(vOr)} offset:{128*jp+3072*i}")
            pend.append(('r', jp, i))

    def stores(jp):
        vOp = vOpS[jp % 2]
        for i in range(4):
            wait_for([('r', jp, i)])
            e(f"buffer_store_dwordx4 {vr(vOp+4*i,4)}, {vr(vOg)}, {sr(S_O,4)}, {sr(sI+i)} offen offset:{128*jp} {stp}")

    for n in range(24):
        jp, s, jj = seq[n]
        wait_for([('vp', n)])
        ob = vOa if jp % 2 == 0 else vOa2
        a = ob + 16 * jj
        cin = "0" if s == 0 else vr(a, 16)
        e(f"v_mfma_f32_32x32x16_bf16 {vr(a,16)}, {vr(vVP+4*(n%NS),4)}, {vr(vPf+4*s,4)}, {cin}")
        if issued < 24:
            vp_read(issued)
            issued += 1
        if n % 8 == 1 and jp >= 1:
            e("s_nop 7")
            e("s_nop 1")
            epilogue(jp - 1)
        if n % 8 == 4 and jp >= 1:
            stores(jp - 1)
    e("s_nop 7")
    e("s_nop 3")
    epilogue(2)
    stores(2)
    stamp(10)
    if TS:
        e("s_waitcnt vmcnt(0)")
        stamp(11)
        e("s_branch L_TS")
    else:
        e("s_endpgm")

    g.label("L_HELP")
    for i in range(4, 10):
        stamp2(i)
    e(f"v_mov_b32 {vr(vSy)}, {SYNC}")
    e(f"v_mov_b32 {vr(vOne)}, 1")
    e(f"s_mov_b32 {sr(sCnt)}, 0")
    e(f"s_cmp_eq_u32 {sr(sW)}, 8")
    e("s_cbranch_scc0 L_POLLER")
    c("---- Q loader")
    vQd = 32
    e(f"v_lshlrev_b32 {vr(vT+2)}, 2, {vr(vLane)}")
    e(f"v_add_u32 {vr(vT+2)}, {SYNC}, {vr(vT+2)}")
    e(f"v_mov_b32 {vr(vT+3)}, 0")
    e(f"ds_write_b32 {vr(vT+2)}, {vr(vT+3)}")
    e(f"v_lshrrev_b32 {vr(vT)}, 3, {vr(vLane)}")
    e(f"v_and_b32 {vr(vT+4)}, 7, {vr(vLane)}")
    e(f"v_lshrrev_b32 {vr(vT+2)}, 4, {vr(vLane)}")
    e(f"v_xor_b32 {vr(vT+3)}, {vr(vT+2)}, {vr(vT+4)}")
    e(f"v_lshlrev_b32 {vr(vT+3)}, 4, {vr(vT+3)}")
    e(f"v_lshl_add_u32 {vr(vQd)}, {vr(vT)}, 7, {vr(vT+3)}")
    e(f"v_xor_b32 {vr(vQd+1)}, 64, {vr(vQd)}")
    e(f"s_mul_i32 {sr(sT1)}, {sr(sSub)}, 98304")
    e(f"s_add_u32 {sr(sT1)}, {sr(sT1)}, {sr(sT0)}")
    e(f"s_mov_b32 {sr(S_Q+2)}, 98304")
    e(f"s_mov_b32 {sr(S_Q+3)}, 0x00020000")
    e("s_waitcnt lgkmcnt(0)")
    e(f"s_add_u32 {sr(S_Q)}, s4, {sr(sT1)}")
    e(f"s_addc_u32 {sr(S_Q+1)}, s5, 0")
    for i in range(NPB):
        e("s_barrier")

    def q_instr(i):
        if i % 4 == 0:
            e(f"s_mov_b32 {sr(sT3)}, {1024*i}")
            e(f"s_mov_b32 m0, {sr(sT3)}")
            e("s_nop 0")
        e(f"buffer_load_dwordx4 {vr(vQd+(i&1))}, {sr(S_Q,4)}, {sr(sT3)} offen offset:{1024*(i&3)} {opt.qpol} lds")

    qs = [int(x) for x in opt.qsched.split(",")]
    nq = 0
    for t in range(8):
        e("s_barrier")
        if t == 0:
            stamp(1)
        if t >= 5:
            lim = min(nq + qs[t - 5], 24 * (t - 4))
            while nq < lim:
                q_instr(nq)
                nq += 1
    stamp(2)
    e("s_barrier")
    stamp(3)
    stamp(6)
    stamp(7)
    e("s_waitcnt lgkmcnt(0)")
    QD = min(opt.qdepth, 63)
    posted = [0]
    tail = [0]

    def post(kb):
        kb = kb // 12 * 12
        if kb > posted[0]:
            e(f"v_mov_b32 {vr(vX)}, {kb}")
            e(f"{'ds_max_u32' if tail[0] else 'ds_write_b32'} {vr(vSy)}, {vr(vX)} offset:12")
            posted[0] = kb
    QG = opt.qgran
    landed = 0
    i = nq
    if opt.qpause:
        assert nq % 4 == 0 and QD % 4 == 0
        sQi = 12

        def q4():
            e(f"s_mov_b32 m0, {sr(sQi)}")
            e("s_nop 0")
            for k in range(4):
                e(f"buffer_load_dwordx4 {vr(vQd+(k&1))}, {sr(S_Q,4)}, {sr(sQi)} offen offset:{1024*k} {opt.qpol} lds")
            e(f"s_add_u32 {sr(sQi)}, {sr(sQi)}, 4096")
        e(f"s_mov_b32 {sr(sQi)}, {1024*nq}")
        g.label("L_QA")
        e(f"ds_read_b32 {vr(vX)}, {vr(vSy)} offset:8")
        e(f"s_lshr_b32 {sr(sT1)}, {sr(sQi)}, 10")
        e(f"s_sub_u32 {sr(sT1)}, {sr(sT1)}, {QD-4}")
        e(f"s_max_i32 {sr(sT1)}, {sr(sT1)}, 0")
        e(f"v_mov_b32 {vr(vX+1)}, {sr(sT1)}")
        e(f"s_waitcnt vmcnt({QD-4}) lgkmcnt(0)")
        e(f"ds_write_b32 {vr(vSy)}, {vr(vX+1)} offset:12")
        e(f"v_readfirstlane_b32 {sr(sT0)}, {vr(vX)}")
        e(f"s_and_b32 {sr(sT0)}, {sr(sT0)}, {opt.qpm}")
        e(f"s_bcnt1_i32_b32 {sr(sT0)}, {sr(sT0)}")
        e(f"s_cmp_ge_u32 {sr(sT0)}, {opt.qpause}")
        e("s_cbranch_scc1 L_QB")
        q4()
        e(f"s_cmp_lt_u32 {sr(sQi)}, 98304")
        e("s_cbranch_scc1 L_QA")
        e("s_branch L_QT")
        g.label("L_QB")
        stamp(6)
        g.label("L_QB2")
        e(f"ds_read_b32 {vr(vX)}, {vr(vSy)} offset:4")
        e(f"s_add_u32 {sr(sCnt)}, {sr(sCnt)}, 1")
        e("s_waitcnt lgkmcnt(0)")
        e(f"v_readfirstlane_b32 {sr(sT0)}, {vr(vX)}")
        e(f"s_cmp_ge_u32 {sr(sT0)}, {opt.qres}")
        e("s_cbranch_scc1 L_QC0")
        e(f"s_cmp_gt_u32 {sr(sCnt)}, {SPIN*20}")
        e("s_cbranch_scc0 L_QB2")
        g.label("L_QC0")
        stamp(7)
        if TS:
            e(f"s_lshr_b32 {sr(sCnt)}, {sr(sQi)}, 10")
        g.label("L_QC")
        if opt.qd2 < 63:
            e(f"s_lshr_b32 {sr(sT1)}, {sr(sQi)}, 10")
            e(f"s_sub_u32 {sr(sT1)}, {sr(sT1)}, {opt.qd2-4}")
            e(f"s_max_i32 {sr(sT1)}, {sr(sT1)}, 0")
            e(f"v_max_u32 {vr(vX+1)}, {sr(sT1)}, {vr(vX+1)}")
            e(f"s_waitcnt vmcnt({opt.qd2-4})")
            e(f"ds_write_b32 {vr(vSy)}, {vr(vX+1)} offset:12")
        q4()
        e(f"s_cmp_lt_u32 {sr(sQi)}, 98304")
        e("s_cbranch_scc1 L_QC")
        g.label("L_QT")
        i = 96
    while i < 96:
        n = min(QG, 96 - i)
        need = i + n - QD
        if need > landed:
            for kb in range(12, 97, 12):
                if landed < kb < need:
                    e(f"s_waitcnt vmcnt({min(63, i-kb)})")
                    post(kb)
            e(f"s_waitcnt vmcnt({min(63, i-need)})")
            landed = need
            post(landed)
        for k in range(n):
            q_instr(i + k)
        i += n
    stamp(4)
    tail[0] = 1
    e("s_mov_b64 exec, 1")
    for kb in range(36 if opt.qpause else 12, 97, 12):
        if kb > posted[0]:
            e(f"s_waitcnt vmcnt({min(63, 96-kb)})")
            post(kb)
    stamp(5)
    if TS:
        for i in range(8 if opt.qpause else 6, 12):
            stamp(i)
        e("s_branch L_TS")
    else:
        e("s_waitcnt lgkmcnt(0)")
        e("s_endpgm")

    c("---- poller")
    g.label("L_POLLER")
    vFl, vDb, vRd = 32, 33, 34
    e(f"v_lshlrev_b32 {vr(vFl)}, 2, {vr(vLane)}")
    e(f"v_mov_b32 {vr(vT+3)}, 0")
    e(f"s_lshl_b32 {sr(sT1)}, {sr(sH)}, 2")
    e(f"s_add_u32 {sr(sT1)}, {sr(sT1)}, 128")
    e(f"v_mov_b32 {vr(vDb)}, {sr(sT1)}")
    e(f"s_mov_b32 {sr(S_D+2)}, 256")
    e(f"s_mov_b32 {sr(S_D+3)}, 0x00020000")
    e("s_waitcnt lgkmcnt(0)")
    flag_srd()
    e(f"s_mov_b32 {sr(S_D)}, s16")
    e(f"s_mov_b32 {sr(S_D+1)}, s17")
    if opt.warm & 2:
        c("pull this workgroup's share of the code into L2")
        e(f"s_getpc_b64 {sr(S_KV,2)}")
        g.label("L_PC")
        e(f"s_mul_i32 {sr(sT1)}, {sr(sSub)}, ((L_END-{NAME}_kernel+4+511)/512)*64")
        e(f"s_sub_u32 {sr(S_KV)}, {sr(S_KV)}, L_PC-{NAME}_kernel")
        e(f"s_subb_u32 {sr(S_KV+1)}, {sr(S_KV+1)}, 0")
        e(f"s_mov_b32 {sr(S_KV+2)}, L_END-{NAME}_kernel+4")
        e(f"s_mov_b32 {sr(S_KV+3)}, 0x00020000")
        e(f"v_lshl_add_u32 {vr(40)}, {vr(vLane)}, 6, {sr(sT1)}")
        e(f"buffer_load_dword {vr(41)}, {vr(40)}, {sr(S_KV,4)}, 0 offen")
    if opt.warm & 1:
        c("touch the pages used later (address translation warm-up)")
        e(f"s_mul_i32 {sr(sT1)}, {sr(sSub)}, 98304")
        e(f"s_add_u32 {sr(sT1)}, {sr(sT1)}, {sr(sT0)}")
        e(f"s_add_u32 {sr(S_O)}, s14, {sr(sT1)}")
        e(f"s_addc_u32 {sr(S_O+1)}, s15, 0")
        e(f"s_mov_b32 {sr(S_O+2)}, 98304")
        e(f"s_mov_b32 {sr(S_O+3)}, 0x00020000")
        e(f"s_add_u32 {sr(S_Q)}, s4, {sr(sT1)}")
        e(f"s_addc_u32 {sr(S_Q+1)}, s5, 0")
        e(f"s_mov_b32 {sr(S_Q+2)}, 98304")
        e(f"s_mov_b32 {sr(S_Q+3)}, 0x00020000")
        e(f"s_mul_i32 {sr(sT1)}, {sr(sH)}, 98304")
        e(f"s_add_u32 {sr(S_P)}, s18, {sr(sT1)}")
        e(f"s_addc_u32 {sr(S_P+1)}, s19, 0")
        e(f"s_mov_b32 {sr(S_P+2)}, 98304")
        e(f"s_mov_b32 {sr(S_P+3)}, 0x00020000")
        e(f"v_lshlrev_b32 {vr(42)}, {opt.wsh}, {vr(vLane)}")

    def tlbwarm():
        e("s_mov_b64 exec, -1")
        e(f"buffer_load_dword {vr(43)}, {vr(42)}, {sr(S_P,4)}, 0 offen sc1")
        e(f"buffer_load_dword {vr(44)}, {vr(42)}, {sr(S_O,4)}, 0 offen sc1")
        e(f"buffer_load_dword {vr(45)}, {vr(42)}, {sr(S_Q,4)}, 0 offen nt")
        e(f"buffer_load_dword {vr(46)}, {vr(vFl)}, {sr(S_F,4)}, 0 offen sc1")
        e(f"s_load_dword s3, {sr(S_F,2)}, 2048")
    if (opt.warm & 1) and opt.wt < 0:
        tlbwarm()
    if opt.warm & 4:
        c("pull a share of E / F into L2")
        e(f"s_lshr_b32 {sr(sT1)}, {sr(sH)}, 3")
        e(f"s_and_b32 {sr(sT2)}, {sr(sSub)}, 3")
        e(f"s_lshl2_add_u32 {sr(sT1)}, {sr(sT2)}, {sr(sT1)}")
        e(f"s_lshl_b32 {sr(sT1)}, {sr(sT1)}, 14")
        e(f"s_cmp_lt_u32 {sr(sSub)}, 4")
        e(f"s_cselect_b32 {sr(S_E)}, s10, s12")
        e(f"s_cselect_b32 {sr(S_E+1)}, s11, s13")
        e(f"s_mov_b32 {sr(S_E+2)}, 262144")
        e(f"s_mov_b32 {sr(S_E+3)}, 0x00020000")
        e(f"v_lshl_add_u32 {vr(47)}, {vr(vLane)}, 6, {sr(sT1)}")

    def ewarm():
        m = ((1 << 32) - 1) & ~((1 << (4 * opt.ew0)) - 1)
        e(f"s_mov_b32 exec_lo, 0x{m:x}")
        e(f"s_mov_b32 exec_hi, 0x{m:x}")
        for i in range(4):
            if i:
                e(f"s_movk_i32 {sr(sT2)}, {4096*i}")
            e(f"buffer_load_dword {vr(48+i)}, {vr(47)}, {sr(S_E,4)}, {sr(sT2) if i else 0} offen")
        e("s_mov_b64 exec, -1")
    if (opt.warm & 4) and opt.ewt < 0:
        ewarm()
    e(f"s_cmp_lg_u32 {sr(sSub)}, 0")
    e("s_cbranch_scc1 L_NOCLR")
    e(f"buffer_store_dword {vr(vT+3)}, {vr(vFl)}, {sr(S_F,4)}, 0 offen sc1")
    g.label("L_NOCLR")
    for i in range(NPB):
        e("s_barrier")
        if (opt.warm & 4) and opt.ewt == i:
            ewarm()
    e("s_mov_b64 exec, 1")

    def signal():
        e(f"s_cmp_lg_u32 {sr(sSub)}, 0")
        e("s_cbranch_scc1 L_NOSIG")
        e("s_waitcnt vmcnt(0)")
        e(f"buffer_store_dword {vr(vOne)}, {vr(vDb)}, {sr(S_D,4)}, 0 offen sc1")
        g.label("L_NOSIG")
    if opt.sigt < 0:
        signal()
    for t in range(8):
        e("s_barrier")
        if t == 0:
            stamp(1)
        if t == opt.sigt:
            signal()
        if (opt.warm & 1) and opt.wt == t:
            tlbwarm()
            e("s_mov_b64 exec, 1")
        if t == 4:
            e(f"buffer_load_dword {vr(vRd)}, {vr(vDb)}, {sr(S_D,4)}, 0 offen sc1")
    g.label("L_CHK")
    e("s_waitcnt vmcnt(0)")
    e(f"v_readfirstlane_b32 {sr(sT0)}, {vr(vRd)}")
    e(f"s_cmp_eq_u32 {sr(sT0)}, 1")
    e("s_cbranch_scc1 L_CHK_DONE")
    e(f"s_add_u32 {sr(sCnt)}, {sr(sCnt)}, 1")
    e(f"s_cmp_gt_u32 {sr(sCnt)}, {SPIN}")
    e("s_cbranch_scc1 L_CHK_DONE")
    e("s_sleep 4")
    e(f"buffer_load_dword {vr(vRd)}, {vr(vDb)}, {sr(S_D,4)}, 0 offen sc1")
    e("s_branch L_CHK")
    g.label("L_CHK_DONE")
    stamp(2)
    e("s_barrier")
    stamp(3)
    e(f"s_mov_b32 {sr(sCnt)}, 0")
    e(f"s_mov_b32 {sr(sMask)}, 0")
    e(f"s_mov_b64 exec, {-1 if WF else 0xff}")
    if opt.pdelay:
        c("first poll once this workgroup's own stores have drained")
        g.label("L_PD")
        e(f"ds_read_b32 {vr(vX)}, {vr(vSy)}")
        e(f"s_add_u32 {sr(sCnt)}, {sr(sCnt)}, 1")
        e("s_waitcnt lgkmcnt(0)")
        e(f"v_readfirstlane_b32 {sr(sT0)}, {vr(vX)}")
        e(f"s_cmp_ge_u32 {sr(sT0)}, {opt.pdelay}")
        e("s_cbranch_scc1 L_PD_DONE")
        e(f"s_cmp_gt_u32 {sr(sCnt)}, {SPIN*20}")
        e("s_cbranch_scc0 L_PD")
        g.label("L_PD_DONE")
        e(f"s_mov_b32 {sr(sCnt)}, 0")
    g.label("L_POLL")
    if opt.spoll:
        e(f"s_load_dwordx8 s[20:27], {sr(S_F,2)}, 0 glc")
    else:
        e(f"buffer_load_dword {vr(vRd)}, {vr(vFl)}, {sr(S_F,4)}, 0 offen sc1")
    e(f"s_add_u32 {sr(sCnt)}, {sr(sCnt)}, 1")
    e(f"s_cmp_gt_u32 {sr(sCnt)}, {SPIN}")
    e(f"s_cselect_b32 {sr(sT1)}, 0xff, {sr(sMask) if opt.spoll else 0}")
    if opt.spoll:
        c("device-scope vector poll as well once the fast polls have not finished the job")
        e(f"s_cmp_lt_u32 {sr(sCnt)}, {opt.vfall}")
        e("s_cbranch_scc1 L_POLL_S")
        e(f"buffer_load_dword {vr(vRd)}, {vr(vFl)}, {sr(S_F,4)}, 0 offen sc1")
        e("s_waitcnt vmcnt(0)")
        e(f"v_cmp_eq_u32 vcc, 1, {vr(vRd)}")
        e("s_nop 1")
        e(f"s_or_b32 {sr(sT1)}, {sr(sT1)}, vcc_lo")
        g.label("L_POLL_S")
        e("s_waitcnt lgkmcnt(0)")
        for j in range(8):
            e(f"s_cmp_eq_u32 s{20+j}, 1")
            e(f"s_cselect_b32 s{20+j}, {1<<j}, 0")
            e(f"s_or_b32 {sr(sT1)}, {sr(sT1)}, s{20+j}")
        e(f"s_mov_b32 {sr(sT0)}, {sr(sT1)}")
    else:
        e("s_waitcnt vmcnt(0)")
        e(f"v_cmp_eq_u32 vcc, 1, {vr(vRd)}")
    if opt.spoll:
        pass
    elif WF:
        c("byte-wise AND reduction of the 64 wave flags")
        e(f"s_lshr_b64 {sr(sT2+1,2) if False else 's[12:13]'}, vcc, 4")
        e("s_and_b64 s[12:13], s[12:13], vcc")
        e("s_lshr_b64 s[14:15], s[12:13], 2")
        e("s_and_b64 s[12:13], s[12:13], s[14:15]")
        e("s_lshr_b64 s[14:15], s[12:13], 1")
        e("s_and_b64 s[12:13], s[12:13], s[14:15]")
        for r_ in (12, 13):
            e(f"s_and_b32 s{r_}, s{r_}, 0x01010101")
            e(f"s_mul_i32 s{r_}, s{r_}, 0x01020408")
            e(f"s_bfe_u32 s{r_}, s{r_}, 0x40018")
        e("s_lshl4_add_u32 s12, s13, s12")
        e(f"s_or_b32 {sr(sT0)}, {sr(sT1)}, s12")
    else:
        e("s_nop 1")
        e(f"s_or_b32 {sr(sT0)}, {sr(sT1)}, vcc_lo")
    e(f"s_cmp_eq_u32 {sr(sT0)}, {sr(sMask)}")
    e("s_cbranch_scc1 L_POLL_SAME")
    e(f"v_mov_b32 {vr(vX)}, {sr(sT0)}")
    e(f"ds_write_b32 {vr(vSy)}, {vr(vX)} offset:8")
    if TS:
        e(f"s_cmp_lg_u32 {sr(sMask)}, 0")
        e("s_cbranch_scc1 L_POLL_NOTS")
        stamp(4)
        g.label("L_POLL_NOTS")
    e(f"s_mov_b32 {sr(sMask)}, {sr(sT0)}")
    e(f"s_cmp_eq_u32 {sr(sMask)}, 0xff")
    e("s_cbranch_scc1 L_POLL_DONE")
    g.label("L_POLL_SAME")
    if opt.psleep:
        e(f"s_sleep {opt.psleep}")
    e("s_branch L_POLL")
    g.label("L_POLL_DONE")
    if TS:
        for i in range(5, 12):
            stamp(i)
        g.label("L_TS")
        e("s_waitcnt lgkmcnt(0)")
        c("records: waves 0, 7, 8, 9")
        e(f"s_sub_u32 s3, {sr(sW)}, 6")
        e(f"s_cmp_eq_u32 {sr(sW)}, 0")
        e("s_cselect_b32 s3, 0, s3")
        e("s_cselect_b32 s12, 7, s44")
        e("s_cmp_lt_u32 s12, 7")
        e("s_cbranch_scc1 L_END")
        e(f"s_add_u32 {sr(S_P)}, s18, 0x1000000")
        e(f"s_addc_u32 {sr(S_P+1)}, s19, 0")
        e(f"s_mov_b32 {sr(S_P+2)}, 0x20000")
        e(f"s_mov_b32 {sr(S_P+3)}, 0x00020000")
        e("s_mov_b64 exec, 1")
        e(f"s_lshl_b32 {sr(sT0)}, s3, 7")
        e("s_lshl_b32 s3, s2, 9")
        e(f"s_add_u32 s3, s3, {sr(sT0)}")
        e(f"v_mov_b32 {vr(vT)}, s3")
        e(f"s_mov_b32 {sr(sTS+24)}, 0")
        e(f"s_mov_b32 {sr(sTS+25)}, {sr(sCnt)}")
        for i in range(13):
            e(f"v_mov_b32 {vr(vT+2)}, {sr(sTS+2*i)}")
            e(f"v_mov_b32 {vr(vT+3)}, {sr(sTS+2*i+1)}")
            e(f"buffer_store_dwordx2 {vr(vT+2,2)}, {vr(vT)}, {sr(S_P,4)}, 0 offen offset:{8*i}")
            e("s_nop 1")
    else:
        e("s_waitcnt lgkmcnt(0)")
    g.label("L_END")
    e("s_endpgm")

    return HEADER.format(n=NAME) + "\n".join(g.lines) + FOOTER.format(n=NAME, vgpr=160, acc=160)


if __name__ == "__main__":
    ap = argparse.ArgumentParser()
    ap.add_argument("-o", default=f"cdna_kernels/{NAME}.s")
    ap.add_argument("--ts", type=int, default=0)
    ap.add_argument("--qsched", default="24,0,0")
    ap.add_argument("--qdepth", type=int, default=24)
    ap.add_argument("--qgran", type=int, default=1)
    ap.add_argument("--pbar", type=int, default=1)
    ap.add_argument("--psleep", type=int, default=1)
    ap.add_argument("--pdelay", type=int, default=0)
    ap.add_argument("--wflag", type=int, default=0)
    ap.add_argument("--vearly", type=int, default=1)
    ap.add_argument("--kpol", default="nt")
    ap.add_argument("--qpause", type=int, default=0)
    ap.add_argument("--qpm", type=lambda x: int(x, 0), default=0xff)
    ap.add_argument("--qres", type=int, default=8)
    ap.add_argument("--qd2", type=int, default=63)
    ap.add_argument("--ppol", default="sc1")
    ap.add_argument("--fpol", default="sc1")
    ap.add_argument("--spoll", type=int, default=0)
    ap.add_argument("--stpol", default="sc1")
    ap.add_argument("--warm", type=int, default=0)
    ap.add_argument("--wsh", type=int, default=12)
    ap.add_argument("--sigt", type=int, default=-1)
    ap.add_argument("--smid", type=int, default=4)
    ap.add_argument("--k3late", type=int, default=0)
    ap.add_argument("--ewt", type=int, default=-1)
    ap.add_argument("--ew0", type=int, default=0)
    ap.add_argument("--wt", type=int, default=-1)
    ap.add_argument("--qpol", default="nt")
    ap.add_argument("--vfall", type=int, default=12)
    opt = ap.parse_args()
    open(opt.o, "w").write(gen(opt))
```

```python
import sys, math, argparse, struct

NAME = "standalone__low_rank_proj_linformer__prompt"

HEADER = """; Kernarg layout for this problem (64 bytes, ptrs only, base s[0:1]):
; @launch grid=(256,1,1) block=(640,1,1) lds=163840
.amdgcn_target "amdgcn-amd-amdhsa--gfx950"
.text
.globl {n}_kernel
.p2align 8
.type {n}_kernel,@function
{n}_kernel:
"""

FOOTER = """
.section .rodata,"a"
.p2align 6
.amdhsa_kernel {n}_kernel
  .amdhsa_next_free_vgpr {vgpr}
  .amdhsa_next_free_sgpr 102
  .amdhsa_accum_offset {acc}
  .amdhsa_group_segment_fixed_size 0
  .amdhsa_kernarg_size 64
  .amdhsa_user_sgpr_count 2
  .amdhsa_user_sgpr_kernarg_segment_ptr 1
  .amdhsa_system_sgpr_workgroup_id_x 1
.end_amdhsa_kernel
"""


class G:
    def __init__(self):
        self.lines = []

    def e(self, s):
        self.lines.append("    " + s)

    def c(self, s):
        self.lines.append("    ; " + s)

    def label(self, s):
        self.lines.append(s + ":")


def vr(a, n=1):
    return f"v{a}" if n == 1 else f"v[{a}:{a+n-1}]"


def sr(a, n=1):
    return f"s{a}" if n == 1 else f"s[{a}:{a+n-1}]"


def gen(opt):
    g = G()
    e, c = g.e, g.c
    TS = opt.ts
    SPIN = 400000
    WF = opt.wflag
    assert not (WF and opt.pdelay)

    S_KV, S_E, S_Q, S_O, S_P, S_D = 20, 24, 28, 32, 36, 40
    sW, sH, sSub, sT, sNH = 44, 45, 46, 47, 48
    sT0, sT1, sT2, sT3 = 49, 50, 51, 52
    sRT, sCG = 53, 54
    sLO, sHI = 55, 56
    sC = 57
    sI = 58
    sM0K, sM0E = 62, 63
    sCnt = 64
    sCnt2 = 65
    sTS = 66
    sDH = 92
    sNeed = 93
    sXm = 94
    S_F = 96
    sPo = 4
    sIss, sNew, sMask, sMask2 = 7, 8, 9, 10

    vLane = 1
    vSy, vOne, vG, vGw, vFr, vOr, vOg = 2, 3, 4, 5, 6, 7, 8
    vOw = 9
    vX = 14
    vQa = 16
    vK = 32
    vE = 35
    vEa = 36
    vKa = 38
    vPo = 44
    vFo = 45
    vAcc = 48
    vEf = 60
    vKf = 76
    vPk = 124
    vT = 132

    IMG = 98304
    SYNC = 147456
    uid = [0]

    def newlab(p):
        uid[0] += 1
        return f"L_{p}_{uid[0]}"

    def stamp(i):
        if TS == 2 and 4 <= i <= 9:
            return
        if TS:
            e(f"s_memrealtime {sr(sTS+2*i,2)}")

    def stamp2(i):
        if TS == 2:
            e(f"s_memrealtime {sr(sTS+2*i,2)}")

    e("s_cmp_ge_u32 s2, 256")
    e("s_cbranch_scc1 L_END")
    stamp(0)
    e("s_load_dwordx16 s[4:19], s[0:1], 0")
    e(f"v_and_b32 {vr(vLane)}, 63, v0")
    e(f"v_lshrrev_b32 {vr(vT)}, 6, v0")
    e(f"s_and_b32 {sr(sH)}, s2, 31")
    e(f"v_readfirstlane_b32 {sr(sW)}, {vr(vT)}")
    e(f"s_lshr_b32 {sr(sSub)}, s2, 5")
    e(f"v_mul_u32_u24 {vr(vT+2)}, 171, {vr(vLane)}")
    e(f"v_lshlrev_b32 {vr(vT+1)}, 4, {vr(vLane)}")
    e(f"s_mul_i32 {sr(sT0)}, {sr(sH)}, 786432")
    e(f"s_cmp_ge_u32 {sr(sW)}, 8")
    e("s_cbranch_scc1 L_HELP")
    e(f"s_movk_i32 {sr(sT3)}, 192")
    e(f"s_lshr_b32 {sr(sT)}, {sr(sSub)}, 2")
    e(f"s_bfe_u32 {sr(sNH)}, {sr(sSub)}, 0x10001")
    e(f"s_and_b32 {sr(sDH)}, {sr(sSub)}, 1")
    e(f"v_lshrrev_b32 {vr(vT+3)}, 11, {vr(vT+2)}")
    e(f"v_mad_u32_u24 {vr(vK)}, {vr(vT+3)}, {sr(sT3)}, {vr(vT+1)}")
    e(f"v_add_u32 {vr(vT+3)}, 10944, {vr(vT+2)}")
    e(f"v_lshrrev_b32 {vr(vT+3)}, 11, {vr(vT+3)}")
    e(f"v_and_b32 {vr(vT+4)}, 32, {vr(vLane)}")
    e(f"v_xor_b32 {vr(vT+4)}, {vr(vT+4)}, {vr(vT+1)}")
    e(f"v_mad_u32_u24 {vr(vK+1)}, {vr(vT+3)}, {sr(sT3)}, {vr(vT+4)}")
    e(f"v_add_u32 {vr(vT+3)}, 21888, {vr(vT+2)}")
    e(f"v_lshrrev_b32 {vr(vT+3)}, 11, {vr(vT+3)}")
    e(f"v_xor_b32 {vr(vT+4)}, 32, {vr(vT+1)}")
    e(f"v_mad_u32_u24 {vr(vK+2)}, {vr(vT+3)}, {sr(sT3)}, {vr(vT+4)}")
    c("K/V source offset: h*786432 + nh*393216 + dh*192 + w*6144")
    e(f"s_mul_i32 {sr(sM0K)}, {sr(sW)}, 3072")
    e(f"s_mul_i32 {sr(sT2)}, {sr(sDH)}, 192")
    e(f"s_lshl1_add_u32 {sr(sT2)}, {sr(sM0K)}, {sr(sT2)}")
    e(f"s_mul_i32 {sr(sT1)}, {sr(sNH)}, 393216")
    e(f"s_add_u32 {sr(sT1)}, {sr(sT1)}, {sr(sT0)}")
    e(f"s_add_u32 {sr(sT1)}, {sr(sT1)}, {sr(sT2)}")
    e(f"s_sub_u32 {sr(S_KV+2)}, 393216, {sr(sT2)}")
    e(f"s_mov_b32 {sr(S_KV+3)}, 0x00020000")
    c("E pattern")
    e(f"v_lshrrev_b32 {vr(vT)}, 3, {vr(vLane)}")
    e(f"s_lshl_b32 {sr(sT2)}, {sr(sW)}, 3")
    e(f"v_add_u32 {vr(vT+2)}, {sr(sT2)}, {vr(vT)}")
    e(f"v_bfe_u32 {vr(vT+3)}, {vr(vT+2)}, 1, 3")
    e(f"v_and_b32 {vr(vT+4)}, 7, {vr(vLane)}")
    e(f"v_xor_b32 {vr(vT+3)}, {vr(vT+3)}, {vr(vT+4)}")
    e(f"v_lshlrev_b32 {vr(vT+3)}, 4, {vr(vT+3)}")
    e(f"v_lshl_add_u32 {vr(vE)}, {vr(vT+2)}, 12, {vr(vT+3)}")
    e(f"s_lshl_b32 {sr(sM0E)}, {sr(sW)}, 10")
    e(f"s_add_u32 {sr(sM0E)}, {sr(sM0E)}, {IMG}")
    e(f"s_lshl_b32 {sr(sT2)}, {sr(sNH)}, 11")
    e(f"s_sub_u32 {sr(S_E+2)}, 262144, {sr(sT2)}")
    e(f"s_mov_b32 {sr(S_E+3)}, 0x00020000")
    stamp2(4)
    e(f"s_cmp_eq_u32 {sr(sT)}, 0")
    e("s_waitcnt lgkmcnt(0)")
    stamp2(5)
    e(f"s_cselect_b32 {sr(S_KV)}, s6, s8")
    e(f"s_cselect_b32 {sr(S_KV+1)}, s7, s9")
    e(f"s_cselect_b32 {sr(S_E)}, s10, s12")
    e(f"s_cselect_b32 {sr(S_E+1)}, s11, s13")
    e(f"s_add_u32 {sr(S_KV)}, {sr(S_KV)}, {sr(sT1)}")
    e(f"s_addc_u32 {sr(S_KV+1)}, {sr(S_KV+1)}, 0")
    e(f"s_add_u32 {sr(S_E)}, {sr(S_E)}, {sr(sT2)}")
    e(f"s_addc_u32 {sr(S_E+1)}, {sr(S_E+1)}, 0")

    vq = []

    def issue_k(t, q):
        e(f"s_add_u32 m0, {sr(sM0K)}, {24576*(t%4)}")
        e(f"s_mov_b32 {sr(sT3)}, {49152*t}")
        for i in range(3):
            e(f"buffer_load_dwordx4 {vr(vK+i)}, {sr(S_KV,4)}, {sr(sT3)} offen offset:{1024*i} {opt.kpol} lds")
        q.extend([t] * 3)

    def issue_e(t, q):
        for st in range(2):
            e(f"s_add_u32 m0, {sr(sM0E)}, {16384*(t%3)+8192*st}")
            e(f"s_movk_i32 {sr(sT3)}, {256*t+128*st}")
            e(f"buffer_load_dwordx4 {vr(vE)}, {sr(S_E,4)}, {sr(sT3)} offen lds")
        q.extend([t] * 2)

    NPB = (2 if opt.k3late else 3) if opt.pbar else 0

    def initial(ts_):
        for t in ts_:
            if t == 3 and opt.k3late:
                continue
            issue_k(t, vq)
            if t < 3:
                issue_e(t, vq)
                if t == 0:
                    stamp2(6)
                if t < NPB:
                    e("s_barrier")
    initial(range(opt.smid))
    if opt.smid == 4:
        stamp2(7)

    c("remaining SRDs")
    e(f"s_and_b32 {sr(sRT)}, {sr(sW)}, 3")
    e(f"s_lshr_b32 {sr(sCG)}, {sr(sW)}, 2")
    e(f"s_mul_i32 {sr(sT1)}, {sr(sSub)}, 98304")
    e(f"s_add_u32 {sr(sT1)}, {sr(sT1)}, {sr(sT0)}")
    e(f"s_add_u32 {sr(S_O)}, s14, {sr(sT1)}")
    e(f"s_addc_u32 {sr(S_O+1)}, s15, 0")
    e(f"s_mov_b32 {sr(S_O+2)}, 98304")
    e(f"s_mov_b32 {sr(S_O+3)}, 0x00020000")
    e(f"s_mul_i32 {sr(sT1)}, {sr(sH)}, 98304")
    e(f"s_add_u32 {sr(S_P)}, s18, {sr(sT1)}")
    e(f"s_addc_u32 {sr(S_P+1)}, s19, 0")
    e(f"s_mov_b32 {sr(S_P+2)}, 98304")
    e(f"s_mov_b32 {sr(S_P+3)}, 0x00020000")

    def flag_srd():
        e(f"s_mul_i32 {sr(sT1)}, {sr(sH)}, 4352")
        e(f"s_add_u32 {sr(sT1)}, {sr(sT1)}, 0x800000")
        e(f"s_add_u32 {sr(S_F)}, s18, {sr(sT1)}")
        e(f"s_addc_u32 {sr(S_F+1)}, s19, 0")
        e(f"s_mov_b32 {sr(S_F+2)}, {256 if WF else 32}")
        e(f"s_mov_b32 {sr(S_F+3)}, 0x00020000")
    flag_srd()
    e(f"s_mov_b32 {sr(sLO)}, 0x00003f80")
    e(f"s_mov_b32 {sr(sHI)}, 0x3f800000")
    cst = math.log2(math.e) / math.sqrt(192.0)
    e(f"s_mov_b32 {sr(sC)}, 0x{struct.unpack('<I', struct.pack('<f', cst))[0]:08x}")
    for i in range(4):
        e(f"s_mov_b32 {sr(sI+i)}, {3072*i}")
    e(f"v_mov_b32 {vr(vSy)}, {SYNC}")
    e(f"v_mov_b32 {vr(vOne)}, 1")
    if WF:
        e(f"s_lshl_b32 {sr(sT1)}, {sr(sSub)}, 3")
        e(f"s_add_u32 {sr(sT1)}, {sr(sT1)}, {sr(sW)}")
        e(f"s_lshl_b32 {sr(sT1)}, {sr(sT1)}, 2")
    else:
        e(f"s_lshl_b32 {sr(sT1)}, {sr(sSub)}, 2")
    e(f"v_mov_b32 {vr(vFo)}, {sr(sT1)}")

    c("E frag addrs")
    e(f"v_lshrrev_b32 {vr(vT+2)}, 4, {vr(vLane)}")
    e(f"v_and_b32 {vr(vT+3)}, 15, {vr(vLane)}")
    e(f"v_lshrrev_b32 {vr(vT+5)}, 1, {vr(vT+3)}")
    e(f"v_xor_b32 {vr(vT+5)}, {vr(vT+5)}, {vr(vT+2)}")
    e(f"v_lshlrev_b32 {vr(vT+5)}, 4, {vr(vT+5)}")
    e(f"v_lshl_add_u32 {vr(vT+5)}, {vr(vT+3)}, 7, {vr(vT+5)}")
    e(f"s_lshl_b32 {sr(sT1)}, {sr(sRT)}, 11")
    e(f"s_add_u32 {sr(sT1)}, {sr(sT1)}, {IMG}")
    e(f"v_add_u32 {vr(vEa)}, {sr(sT1)}, {vr(vT+5)}")
    e(f"v_xor_b32 {vr(vEa+1)}, 64, {vr(vEa)}")

    c("K frag addrs: column tiles (4cg, 4cg+1, 2+cg)")
    e(f"v_bfe_u32 {vr(vT+5)}, {vr(vLane)}, 2, 2")
    e(f"v_lshl_add_u32 {vr(vT+5)}, {vr(vT+2)}, 3, {vr(vT+5)}")
    e(f"v_mul_u32_u24 {vr(vT+5)}, 192, {vr(vT+5)}")
    e(f"v_and_b32 {vr(vT+6)}, 3, {vr(vLane)}")
    e(f"v_lshl_add_u32 {vr(vT+5)}, {vr(vT+6)}, 3, {vr(vT+5)}")
    e(f"v_bfe_u32 {vr(vT+6)}, {vr(vLane)}, 4, 1")
    e(f"v_lshlrev_b32 {vr(vT+6)}, 5, {vr(vT+6)}")
    e(f"s_lshl_b32 {sr(sT1)}, {sr(sCG)}, 7")
    e(f"v_xad_u32 {vr(vKa)}, {vr(vT+6)}, {sr(sT1)}, {vr(vT+5)}")
    e(f"v_xor_b32 {vr(vKa+1)}, 32, {vr(vKa)}")
    e(f"s_lshl_b32 {sr(sT1)}, {sr(sCG)}, 5")
    e(f"s_add_u32 {sr(sT1)}, {sr(sT1)}, 64")
    e(f"v_xad_u32 {vr(vKa+2)}, {vr(vT+6)}, {sr(sT1)}, {vr(vT+5)}")
    for a in range(3):
        e(f"v_add_u32 {vr(vKa+3+a)}, 49152, {vr(vKa+a)}")

    c("partial store voffset + soffsets")
    e(f"s_mul_i32 {sr(sT0)}, {sr(sSub)}, 12288")
    e(f"s_lshl_b32 {sr(sT2)}, {sr(sCG)}, 13")
    e(f"s_cmp_eq_u32 {sr(sT)}, 0")
    e("s_cbranch_scc0 L_PO_V")
    e(f"v_lshlrev_b32 {vr(vT+5)}, 4, {vr(vT+3)}")
    e(f"v_lshl_add_u32 {vr(vT+5)}, {vr(vT+6)}, 6, {vr(vT+5)}")
    e(f"v_lshrrev_b32 {vr(vT+6)}, 5, {vr(vLane)}")
    e(f"v_lshl_add_u32 {vr(vPo)}, {vr(vT+6)}, 9, {vr(vT+5)}")
    e(f"s_lshr_b32 {sr(sT1)}, {sr(sRT)}, 1")
    e(f"s_lshl_b32 {sr(sT1)}, {sr(sT1)}, 10")
    e(f"s_add_u32 {sr(sT0)}, {sr(sT0)}, {sr(sT1)}")
    e(f"s_and_b32 {sr(sT1)}, {sr(sRT)}, 1")
    e(f"s_lshl_b32 {sr(sT1)}, {sr(sT1)}, 8")
    e(f"s_add_u32 {sr(sT0)}, {sr(sT0)}, {sr(sT1)}")
    e(f"s_add_u32 {sr(sPo)}, {sr(sT0)}, {sr(sT2)}")
    e(f"s_lshl_b32 {sr(sT1)}, {sr(sCG)}, 11")
    e(f"s_add_u32 {sr(sT1)}, {sr(sT1)}, 4096")
    e(f"s_add_u32 {sr(sPo+1)}, {sr(sT0)}, {sr(sT1)}")
    e(f"s_mov_b32 {sr(sXm)}, 0xffff")
    e(f"s_mov_b32 {sr(sXm+1)}, 0xffff")
    e("s_branch L_PO_DONE")
    g.label("L_PO_V")
    e(f"v_and_b32 {vr(vT+5)}, 3, {vr(vLane)}")
    e(f"v_bfe_u32 {vr(vT+4)}, {vr(vLane)}, 2, 1")
    e(f"v_lshl_or_b32 {vr(vT+5)}, {vr(vT+4)}, 3, {vr(vT+5)}")
    e(f"v_bfe_u32 {vr(vT+4)}, {vr(vLane)}, 3, 1")
    e(f"v_lshl_or_b32 {vr(vT+5)}, {vr(vT+4)}, 2, {vr(vT+5)}")
    e(f"v_or_b32 {vr(vT+5)}, {vr(vT+5)}, {vr(vT+6)}")
    e(f"v_lshlrev_b32 {vr(vT+5)}, 4, {vr(vT+5)}")
    e(f"v_lshrrev_b32 {vr(vT+6)}, 5, {vr(vLane)}")
    e(f"v_lshl_add_u32 {vr(vPo)}, {vr(vT+6)}, 8, {vr(vT+5)}")
    e(f"s_lshl_b32 {sr(sT1)}, {sr(sRT)}, 10")
    e(f"s_add_u32 {sr(sT0)}, {sr(sT0)}, {sr(sT1)}")
    e(f"s_add_u32 {sr(sPo)}, {sr(sT0)}, {sr(sT2)}")
    e(f"s_lshl_b32 {sr(sT1)}, {sr(sCG)}, 8")
    e(f"s_add_u32 {sr(sT1)}, {sr(sT1)}, 4096")
    e(f"s_add_u32 {sr(sPo+1)}, {sr(sT0)}, {sr(sT1)}")
    e(f"s_mov_b32 {sr(sXm)}, -1")
    e(f"s_mov_b32 {sr(sXm+1)}, 0")
    g.label("L_PO_DONE")

    c("gather / frag addresses: 3 KiB contiguous per wave and partial image")
    e(f"v_lshlrev_b32 {vr(vFr)}, 4, {vr(vLane)}")
    e(f"v_add_u32 {vr(vG)}, {sr(sM0K)}, {vr(vFr)}")
    e(f"v_add_u32 {vr(vFr)}, {IMG}, {vr(vFr)}")
    e(f"v_add_u32 {vr(vGw)}, {sr(sM0K)}, {vr(vFr)}")

    c("Q frag addrs")
    e(f"s_mul_i32 {sr(sT1)}, {sr(sW)}, 12288")
    e(f"v_and_b32 {vr(vT+3)}, 31, {vr(vLane)}")
    e(f"v_lshrrev_b32 {vr(vT+2)}, 5, {vr(vLane)}")
    e(f"v_mul_u32_u24 {vr(vT+5)}, 3, {vr(vT+3)}")
    for L in range(3):
        e(f"v_add_u32 {vr(vT+6)}, {L}, {vr(vT+5)}")
        e(f"v_bfe_u32 {vr(vT+4)}, {vr(vT+6)}, 1, 3")
        e(f"v_xor_b32 {vr(vT+4)}, {vr(vT+4)}, {vr(vT+2)}")
        e(f"v_lshlrev_b32 {vr(vT+4)}, 4, {vr(vT+4)}")
        e(f"v_lshl_add_u32 {vr(vT+6)}, {vr(vT+6)}, 7, {sr(sT1)}")
        for s4 in range(4):
            if s4 == 0:
                e(f"v_add_u32 {vr(vQa+4*L)}, {vr(vT+4)}, {vr(vT+6)}")
            elif s4 < 3:
                e(f"v_xad_u32 {vr(vQa+4*L+s4)}, {vr(vT+4)}, {32*s4}, {vr(vT+6)}")
            else:
                e(f"v_xor_b32 {vr(vT+1)}, 96, {vr(vT+4)}")
                e(f"v_add_u32 {vr(vQa+4*L+s4)}, {vr(vT+1)}, {vr(vT+6)}")
    c("O staging addrs")
    e(f"v_and_b32 {vr(vT+4)}, 7, {vr(vT+3)}")
    e(f"v_xor_b32 {vr(vT+4)}, {vr(vT+4)}, {vr(vT+2)}")
    e(f"v_lshlrev_b32 {vr(vT+4)}, 4, {vr(vT+4)}")
    e(f"v_lshl_add_u32 {vr(vT+6)}, {vr(vT+5)}, 7, {sr(sT1)}")
    for c2 in range(4):
        if c2 == 0:
            e(f"v_add_u32 {vr(vOw)}, {vr(vT+4)}, {vr(vT+6)}")
        elif c2 < 3:
            e(f"v_xad_u32 {vr(vOw+c2)}, {vr(vT+4)}, {32*c2}, {vr(vT+6)}")
        else:
            e(f"v_xor_b32 {vr(vT+1)}, 96, {vr(vT+4)}")
            e(f"v_add_u32 {vr(vOw+c2)}, {vr(vT+1)}, {vr(vT+6)}")
    e(f"v_lshrrev_b32 {vr(vT)}, 3, {vr(vLane)}")
    e(f"v_and_b32 {vr(vT+4)}, 7, {vr(vLane)}")
    e(f"v_mul_u32_u24 {vr(vT+5)}, 384, {vr(vT)}")
    e(f"v_add_u32 {vr(vT+5)}, {sr(sT1)}, {vr(vT+5)}")
    e(f"v_lshl_add_u32 {vr(vOg)}, {vr(vT+4)}, 4, {vr(vT+5)}")
    e(f"v_xor_b32 {vr(vT+4)}, {vr(vT+4)}, {vr(vT)}")
    e(f"v_lshl_add_u32 {vr(vOr)}, {vr(vT+4)}, 4, {vr(vT+5)}")
    e(f"s_mul_i32 {sr(sNeed)}, {sr(sW)}, 12")
    e(f"s_add_u32 {sr(sNeed)}, {sr(sNeed)}, 12")
    e(f"s_mov_b32 {sr(sCnt)}, 0")
    e(f"s_mov_b32 {sr(sIss)}, 0")
    if opt.smid < 4:
        initial(range(opt.smid, 4))
        stamp2(7)

    pend = []

    def wait_for(tags):
        idx = max((pend.index(t_) for t_ in tags if t_ in pend), default=-1)
        if idx < 0:
            return
        after = len(pend) - idx - 1
        e(f"s_waitcnt lgkmcnt({min(15, after)})")
        del pend[:idx + 1]

    def acc(a):
        return vAcc + 4 * a

    def ef(ks):
        return vEf + 4 * ks

    def kf(a, ks):
        return vKf + (ks * 3 + a) * 4

    def phase1(isV):
        q = list(vq)
        for t in range(8):
            c(f"---- tile {t}")
            last = max(i for i, x in enumerate(q) if x == t)
            if t == 0:
                stamp2(8)
            e(f"s_waitcnt vmcnt({len(q)-last-1})")
            if t == 0:
                stamp2(9)
            e("s_barrier")
            if t == 0:
                stamp(1)
            if t >= 1:
                if t + 2 <= 7:
                    issue_e(t + 2, q)
                if t + 3 <= 7:
                    issue_k(t + 3, q)
            p = t % 4
            st, lo = p // 2, (p % 2) * 24576
            pend.clear()

            def reads(ks):
                e(f"ds_read_b128 {vr(ef(ks),4)}, {vr(vEa+(ks&1))} offset:{16384*(t%3)+8192*(ks>>1)}")
                pend.append(('e', ks))
                for a in range(3):
                    for hf in range(2):
                        e(f"ds_read_b64_tr_b16 {vr(kf(a,ks)+2*hf,2)}, {vr(vKa+3*st+a)} offset:{lo+6144*ks+768*hf}")
                        pend.append(('k', ks, a, hf))
            reads(0)
            reads(1)
            for ks in range(4):
                for a in range(3):
                    wait_for([('e', ks), ('k', ks, a, 0), ('k', ks, a, 1)])
                    cin = "0" if (t == 0 and ks == 0) else vr(acc(a), 4)
                    if isV:
                        e(f"v_mfma_f32_16x16x32_bf16 {vr(acc(a),4)}, {vr(ef(ks),4)}, {vr(kf(a,ks),4)}, {cin}")
                    else:
                        e(f"v_mfma_f32_16x16x32_bf16 {vr(acc(a),4)}, {vr(kf(a,ks),4)}, {vr(ef(ks),4)}, {cin}")
                if ks + 2 < 4:
                    reads(ks + 2)
                if t == 0 and opt.k3late and ks == opt.k3late - 1:
                    issue_k(3, q)
        stamp(2)
        c("---- epilogue: pack, swap, store partial")
        e("s_nop 6")
        op = "v_permlane32_swap_b32" if isV else "v_permlane16_swap_b32"
        for a in range(3):
            e(f"v_cvt_pk_bf16_f32 {vr(vPk+2*a)}, {vr(acc(a))}, {vr(acc(a)+1)}")
            e(f"v_cvt_pk_bf16_f32 {vr(vPk+2*a+1)}, {vr(acc(a)+2)}, {vr(acc(a)+3)}")
            if a == 1:
                e("s_nop 1")
                e(f"{op} {vr(vPk)}, {vr(vPk+2)}")
                e(f"{op} {vr(vPk+1)}, {vr(vPk+3)}")
        e(f"buffer_store_dwordx4 {vr(vPk,4)}, {vr(vPo)}, {sr(S_P,4)}, {sr(sPo)} offen {opt.ppol}")
        e("s_nop 0")
        e(f"{op} {vr(vPk+4)}, {vr(vPk+6)}")
        e(f"{op} {vr(vPk+5)}, {vr(vPk+7)}")
        e(f"s_mov_b64 exec, {sr(sXm,2)}")
        e("s_nop 0")
        e(f"buffer_store_dwordx4 {vr(vPk+4,4)}, {vr(vPo)}, {sr(S_P,4)}, {sr(sPo+1)} offen {opt.ppol}")

    e(f"s_cmp_eq_u32 {sr(sT)}, 0")
    e("s_cbranch_scc0 L_P1_V")
    phase1(False)
    e("s_branch L_P1_DONE")
    g.label("L_P1_V")
    phase1(True)
    g.label("L_P1_DONE")

    e("s_mov_b64 exec, 1")
    e("s_barrier")
    e("s_waitcnt vmcnt(0)")
    stamp(3)
    if WF:
        e(f"buffer_store_dword {vr(vOne)}, {vr(vFo)}, {sr(S_F,4)}, 0 offen {opt.fpol}")
    else:
        e(f"ds_add_rtn_u32 {vr(vX)}, {vr(vSy)}, {vr(vOne)}")
        e("s_waitcnt lgkmcnt(0)")
        e(f"v_readfirstlane_b32 {sr(sT0)}, {vr(vX)}")
        e(f"s_cmp_lg_u32 {sr(sT0)}, 7")
        e("s_cbranch_scc1 L_NOPUB")
        e(f"buffer_store_dword {vr(vOne)}, {vr(vFo)}, {sr(S_F,4)}, 0 offen {opt.fpol}")
        g.label("L_NOPUB")
    e("s_mov_b64 exec, -1")

    vGK, vGV = 32, 56
    vGt, vGp = 80, 104

    def gd(j, r):
        return vGK + j * 12 + r * 4

    def issue_g(js):
        for j in js:
            lab = newlab("GI")
            e(f"s_bitcmp1_b32 {sr(sNew)}, {2*j}")
            e(f"s_cbranch_scc0 {lab}")
            e(f"s_mov_b32 {sr(sT1)}, {j*24576}")
            for r in range(3):
                e(f"buffer_load_dwordx4 {vr(gd(j,r),4)}, {vr(vG)}, {sr(S_P,4)}, {sr(sT1)} offen offset:{1024*r} sc1")
            g.label(lab)
        e(f"s_or_b32 {sr(sIss)}, {sr(sIss)}, {sr(sNew)}")

    g.label("L_GL")
    e(f"ds_read_b32 {vr(vX)}, {vr(vSy)} offset:8")
    e(f"s_add_u32 {sr(sCnt)}, {sr(sCnt)}, 1")
    e(f"s_cmp_gt_u32 {sr(sCnt)}, {SPIN*20}")
    e(f"s_cselect_b32 {sr(sT1)}, 0xff, 0")
    e("s_waitcnt lgkmcnt(0)")
    e(f"v_readfirstlane_b32 {sr(sT0)}, {vr(vX)}")
    e(f"s_or_b32 {sr(sT0)}, {sr(sT0)}, {sr(sT1)}")
    e(f"s_lshr_b32 {sr(sT0)}, {sr(sT0)}, {sr(sCG)}")
    e(f"s_and_b32 {sr(sT1)}, {sr(sT0)}, 5")
    e(f"s_and_b32 {sr(sT0)}, {sr(sT0)}, 0x55")
    e(f"s_cmp_eq_u32 {sr(sT1)}, 5")
    e(f"s_cselect_b32 {sr(sT0)}, {sr(sT0)}, {sr(sT1)}")
    e(f"s_andn2_b32 {sr(sNew)}, {sr(sT0)}, {sr(sIss)}")
    e("s_cbranch_scc1 L_GISSUE")
    if opt.psleep:
        e(f"s_sleep {opt.psleep}")
    e("s_branch L_GL")
    g.label("L_GISSUE")
    issue_g(range(4))
    e(f"s_and_b32 {sr(sT0)}, {sr(sIss)}, 5")
    e(f"s_cmp_lg_u32 {sr(sT0)}, 5")
    e("s_cbranch_scc1 L_GL")
    stamp(4)
    if opt.qpause:
        e("s_mov_b64 exec, 1")
        e(f"ds_add_u32 {vr(vSy)}, {vr(vOne)} offset:4")
        e("s_mov_b64 exec, -1")
    e(f"s_lshr_b32 {sr(sT0)}, {sr(sNew)}, 4")
    e(f"s_bcnt1_i32_b32 {sr(sT0)}, {sr(sT0)}")
    e(f"s_cmp_eq_u32 {sr(sT0)}, 2")
    e("s_cbranch_scc1 L_KW2")
    e(f"s_cmp_eq_u32 {sr(sT0)}, 1")
    e("s_cbranch_scc1 L_KW1")
    e("s_waitcnt vmcnt(0)")
    g.label("L_KW1")
    e("s_waitcnt vmcnt(3)")
    g.label("L_KW2")
    e("s_waitcnt vmcnt(6)")

    def gsum(j0, tmp, pkb, off):
        for r in range(3):
            for j in range(2):
                for d in range(4):
                    for hl in range(2):
                        a = tmp + 8 * r + 2 * d + hl
                        cin = "0" if j == 0 else vr(a)
                        e(f"v_dot2_f32_bf16 {vr(a)}, {vr(gd(j0+j,r)+d)}, {sr(sHI if hl else sLO)}, {cin}")
            if r >= 1:
                for d in range(4):
                    e(f"v_cvt_pk_bf16_f32 {vr(pkb+4*(r-1)+d)}, {vr(tmp+8*(r-1)+2*d)}, {vr(tmp+8*(r-1)+2*d+1)}")
                e(f"ds_write_b128 {vr(vGw)}, {vr(pkb+4*(r-1),4)} offset:{off+1024*(r-1)}")
        e("s_nop 1")
        for d in range(4):
            e(f"v_cvt_pk_bf16_f32 {vr(pkb+8+d)}, {vr(tmp+16+2*d)}, {vr(tmp+16+2*d+1)}")
        e(f"ds_write_b128 {vr(vGw)}, {vr(pkb+8,4)} offset:{off+2048}")

    gsum(0, vGt, vGp, 0)
    e("s_waitcnt lgkmcnt(0)")
    e("s_mov_b64 exec, 1")
    e(f"ds_add_u32 {vr(vSy)}, {vr(vOne)} offset:16")
    e("s_mov_b64 exec, -1")
    stamp(5)

    e(f"s_mov_b32 {sr(sCnt2)}, 0")
    g.label("L_W2")
    e(f"ds_read_b64 {vr(vX,2)}, {vr(vSy)} offset:8")
    e(f"ds_read_b32 {vr(vX-1)}, {vr(vSy)} offset:16")
    e(f"s_add_u32 {sr(sCnt2)}, {sr(sCnt2)}, 1")
    e("s_waitcnt lgkmcnt(0)")
    e(f"v_readfirstlane_b32 {sr(sT0)}, {vr(vX)}")
    e(f"v_readfirstlane_b32 {sr(sT2)}, {vr(vX+1)}")
    e(f"v_readfirstlane_b32 {sr(sT3)}, {vr(vX-1)}")
    e(f"s_lshr_b32 {sr(sT0)}, {sr(sT0)}, {sr(sCG)}")
    e(f"s_and_b32 {sr(sT0)}, {sr(sT0)}, 0x55")
    e(f"s_andn2_b32 {sr(sNew)}, {sr(sT0)}, {sr(sIss)}")
    e("s_cbranch_scc0 L_W2_NOV")
    issue_g([2, 3])
    g.label("L_W2_NOV")
    e(f"s_cmp_gt_u32 {sr(sCnt2)}, {SPIN*20}")
    e("s_cbranch_scc1 L_W2_DONE")
    if opt.vearly == 3:
        e(f"s_cmp_eq_u32 {sr(sIss)}, 0x55")
        e("s_cbranch_scc1 L_W2_VSUM")
    e(f"s_cmp_ge_u32 {sr(sT2)}, {sr(sNeed)}")
    e(f"s_cselect_b32 {sr(sT3)}, {sr(sT3)}, 0")
    e(f"s_cmp_eq_u32 {sr(sT3)}, 8")
    e("s_cbranch_scc1 L_W2_DONE")
    if opt.vearly:
        c("V partials complete while still waiting: sum them now")
        e(f"s_cmp_eq_u32 {sr(sIss)}, 0x55")
        e("s_cbranch_scc0 L_W2_SLEEP")
        if opt.vearly == 1:
            e(f"s_cmp_ge_u32 {sr(sT2)}, {sr(sNeed)}")
            e("s_cbranch_scc1 L_W2")
        g.label("L_W2_VSUM")
        e(f"s_mov_b32 {sr(sIss)}, 0xd5")
        e("s_waitcnt vmcnt(0)")
        gsum(2, vGt, vGp, 24576)
        e("s_waitcnt lgkmcnt(0)")
        e("s_mov_b64 exec, 1")
        e(f"ds_add_u32 {vr(vSy)}, {vr(vOne)} offset:20")
        e("s_mov_b64 exec, -1")
        e("s_branch L_W2")
        g.label("L_W2_SLEEP")
    e("s_sleep 1")
    e("s_branch L_W2")
    g.label("L_W2_DONE")
    stamp(6)
    stamp(7)

    vQf = 32
    NQ = 6
    vKP = 80
    vSa = 108
    vPf = 140
    NS = 7
    pend.clear()

    reads = []
    for s in range(12):
        reads.append(('q', s))
        reads.append(('kp', 2 * s))
        reads.append(('kp', 2 * s + 1))
    rp = [0]

    def do_read():
        tag = reads[rp[0]]
        rp[0] += 1
        if tag[0] == 'q':
            s = tag[1]
            e(f"ds_read_b128 {vr(vQf+4*(s%NQ),4)}, {vr(vQa+s)}")
        else:
            n = tag[1]
            e(f"ds_read_b128 {vr(vKP+4*(n%NS),4)}, {vr(vFr)} offset:{n*1024}")
        pend.append(tag)

    def can_issue(nd):
        if rp[0] >= len(reads):
            return False
        tag = reads[rp[0]]
        if tag[0] == 'q':
            return 2 * (tag[1] - NQ + 1) <= nd
        return tag[1] < nd + NS

    while can_issue(0):
        do_read()
    for n in range(24):
        s, rt = n // 2, n % 2
        wait_for([('q', s), ('kp', n)])
        a = vSa + 16 * rt
        cin = "0" if s == 0 else vr(a, 16)
        e(f"v_mfma_f32_32x32x16_bf16 {vr(a,16)}, {vr(vKP+4*(n%NS),4)}, {vr(vQf+4*(s%NQ),4)}, {cin}")
        while can_issue(n + 1):
            do_read()
    e(f"ds_read_b32 {vr(vX)}, {vr(vSy)} offset:8")
    e("s_nop 7")
    e("s_nop 1")
    c("softmax")
    vM, vM2, vSum, vSum2 = 156, 157, 158, 159
    e(f"v_max3_f32 {vr(vM)}, {vr(vSa)}, {vr(vSa+1)}, {vr(vSa+2)}")
    e(f"v_max3_f32 {vr(vM2)}, {vr(vSa+3)}, {vr(vSa+4)}, {vr(vSa+5)}")
    for i in range(6, 30, 4):
        e(f"v_max3_f32 {vr(vM)}, {vr(vM)}, {vr(vSa+i)}, {vr(vSa+i+1)}")
        e(f"v_max3_f32 {vr(vM2)}, {vr(vM2)}, {vr(vSa+i+2)}, {vr(vSa+i+3)}")
    e(f"v_max3_f32 {vr(vM)}, {vr(vM)}, {vr(vSa+30)}, {vr(vSa+31)}")
    e(f"v_max_f32 {vr(vM)}, {vr(vM)}, {vr(vM2)}")
    e(f"v_mov_b32 {vr(vM2)}, {vr(vM)}")
    c("late V loads")
    e("s_waitcnt lgkmcnt(0)")
    e(f"v_readfirstlane_b32 {sr(sT0)}, {vr(vX)}")
    e(f"v_permlane32_swap_b32 {vr(vM)}, {vr(vM2)}")
    e(f"s_lshr_b32 {sr(sT0)}, {sr(sT0)}, {sr(sCG)}")
    e(f"s_and_b32 {sr(sT0)}, {sr(sT0)}, 0x55")
    e(f"s_andn2_b32 {sr(sNew)}, {sr(sT0)}, {sr(sIss)}")
    e("s_cbranch_scc0 L_SM_NOV")
    issue_g([2, 3])
    g.label("L_SM_NOV")
    e(f"v_max_f32 {vr(vM)}, {vr(vM)}, {vr(vM2)}")
    e(f"v_mul_f32 {vr(vM)}, {sr(sC)}, {vr(vM)}")
    for i in range(32):
        e(f"v_fma_f32 {vr(vSa+i)}, {vr(vSa+i)}, {sr(sC)}, -{vr(vM)}")
    for i in range(32):
        e(f"v_exp_f32 {vr(vSa+i)}, {vr(vSa+i)}")
    e("s_nop 0")
    e(f"v_add_f32 {vr(vSum)}, {vr(vSa)}, {vr(vSa+1)}")
    e(f"v_add_f32 {vr(vSum2)}, {vr(vSa+2)}, {vr(vSa+3)}")
    for i in range(4, 32, 2):
        e(f"v_add_f32 {vr(vSum)}, {vr(vSum)}, {vr(vSa+i)}")
        e(f"v_add_f32 {vr(vSum2)}, {vr(vSum2)}, {vr(vSa+i+1)}")
    e(f"v_add_f32 {vr(vSum)}, {vr(vSum)}, {vr(vSum2)}")
    e(f"v_mov_b32 {vr(vSum2)}, {vr(vSum)}")
    e("s_nop 1")
    e(f"v_permlane32_swap_b32 {vr(vSum)}, {vr(vSum2)}")
    e("s_nop 1")
    e(f"v_add_f32 {vr(vSum)}, {vr(vSum)}, {vr(vSum2)}")
    e(f"v_rcp_f32 {vr(vSum)}, {vr(vSum)}")
    e("s_nop 0")
    for i in range(32):
        e(f"v_mul_f32 {vr(vSa+i)}, {vr(vSa+i)}, {vr(vSum)}")
    for i in range(16):
        e(f"v_cvt_pk_bf16_f32 {vr(vPf+i)}, {vr(vSa+2*i)}, {vr(vSa+2*i+1)}")
    stamp(8)
    c("V sum (unless already done)")
    e(f"s_mov_b32 {sr(sCnt2)}, 0")
    e(f"s_cmp_eq_u32 {sr(sIss)}, 0xd5")
    e("s_cbranch_scc1 L_W3")
    g.label("L_VL")
    e(f"s_cmp_eq_u32 {sr(sIss)}, 0x55")
    e("s_cbranch_scc1 L_VSUM")
    e(f"ds_read_b32 {vr(vX)}, {vr(vSy)} offset:8")
    e(f"s_add_u32 {sr(sCnt2)}, {sr(sCnt2)}, 1")
    e(f"s_cmp_gt_u32 {sr(sCnt2)}, {SPIN*20}")
    e(f"s_cselect_b32 {sr(sT1)}, 0xff, 0")
    e("s_waitcnt lgkmcnt(0)")
    e(f"v_readfirstlane_b32 {sr(sT0)}, {vr(vX)}")
    e(f"s_or_b32 {sr(sT0)}, {sr(sT0)}, {sr(sT1)}")
    e(f"s_lshr_b32 {sr(sT0)}, {sr(sT0)}, {sr(sCG)}")
    e(f"s_and_b32 {sr(sT0)}, {sr(sT0)}, 0x55")
    e(f"s_andn2_b32 {sr(sNew)}, {sr(sT0)}, {sr(sIss)}")
    issue_g([2, 3])
    e("s_branch L_VL")
    g.label("L_VSUM")
    e("s_waitcnt vmcnt(0)")
    gsum(2, vGt, 108, 24576)
    e("s_waitcnt lgkmcnt(0)")
    e("s_mov_b64 exec, 1")
    e(f"ds_add_u32 {vr(vSy)}, {vr(vOne)} offset:20")
    e("s_mov_b64 exec, -1")
    e(f"s_mov_b32 {sr(sCnt2)}, 0")
    g.label("L_W3")
    e(f"ds_read_b32 {vr(vX)}, {vr(vSy)} offset:20")
    e(f"s_add_u32 {sr(sCnt2)}, {sr(sCnt2)}, 1")
    e("s_waitcnt lgkmcnt(0)")
    e(f"v_readfirstlane_b32 {sr(sT0)}, {vr(vX)}")
    e(f"s_cmp_eq_u32 {sr(sT0)}, 8")
    e("s_cbranch_scc1 L_W3_DONE")
    e(f"s_cmp_gt_u32 {sr(sCnt2)}, {SPIN*20}")
    e("s_cbranch_scc0 L_W3")
    g.label("L_W3_DONE")
    stamp(9)

    vVP = 32
    vOa = 60
    vOa2 = 92
    vOpS = [124, 16]
    seq = [(jp, s, jj) for jp in range(3) for s in range(4) for jj in range(2)]
    VPB = 24576
    pend.clear()

    def vp_read(n):
        jp, s, jj = seq[n]
        e(f"ds_read_b128 {vr(vVP+4*(n%NS),4)}, {vr(vFr)} offset:{VPB+((2*jp+jj)*4+s)*1024}")
        pend.append(('vp', n))
    stp = opt.stpol
    for n in range(NS):
        vp_read(n)
    issued = NS

    def epilogue(jp):
        ob = vOa if jp % 2 == 0 else vOa2
        vOp = vOpS[jp % 2]
        for jj in range(2):
            a = ob + 16 * jj
            for a2 in range(2):
                pk = vOp + (jj * 2 + a2) * 4
                for d in range(4):
                    e(f"v_cvt_pk_bf16_f32 {vr(pk+d)}, {vr(a+8*a2+2*d)}, {vr(a+8*a2+2*d+1)}")
                e(f"ds_write_b128 {vr(vOw+2*jj+a2)}, {vr(pk,4)} offset:{128*jp}")
                pend.append(('w', jp, jj, a2))
        for i in range(4):
            e(f"ds_read_b128 {vr(vOp+4*i,4)}, {vr(vOr)} offset:{128*jp+3072*i}")
            pend.append(('r', jp, i))

    def stores(jp):
        vOp = vOpS[jp % 2]
        for i in range(4):
            wait_for([('r', jp, i)])
            e(f"buffer_store_dwordx4 {vr(vOp+4*i,4)}, {vr(vOg)}, {sr(S_O,4)}, {sr(sI+i)} offen offset:{128*jp} {stp}")

    for n in range(24):
        jp, s, jj = seq[n]
        wait_for([('vp', n)])
        ob = vOa if jp % 2 == 0 else vOa2
        a = ob + 16 * jj
        cin = "0" if s == 0 else vr(a, 16)
        e(f"v_mfma_f32_32x32x16_bf16 {vr(a,16)}, {vr(vVP+4*(n%NS),4)}, {vr(vPf+4*s,4)}, {cin}")
        if issued < 24:
            vp_read(issued)
            issued += 1
        if n % 8 == 1 and jp >= 1:
            e("s_nop 7")
            e("s_nop 1")
            epilogue(jp - 1)
        if n % 8 == 4 and jp >= 1:
            stores(jp - 1)
    e("s_nop 7")
    e("s_nop 3")
    epilogue(2)
    stores(2)
    stamp(10)
    if TS:
        e("s_waitcnt vmcnt(0)")
        stamp(11)
        e("s_branch L_TS")
    else:
        e("s_endpgm")

    g.label("L_HELP")
    for i in range(4, 10):
        stamp2(i)
    e(f"v_mov_b32 {vr(vSy)}, {SYNC}")
    e(f"v_mov_b32 {vr(vOne)}, 1")
    e(f"s_mov_b32 {sr(sCnt)}, 0")
    e(f"s_cmp_eq_u32 {sr(sW)}, 8")
    e("s_cbranch_scc0 L_POLLER")
    c("---- Q loader")
    vQd = 32
    e(f"v_lshlrev_b32 {vr(vT+2)}, 2, {vr(vLane)}")
    e(f"v_add_u32 {vr(vT+2)}, {SYNC}, {vr(vT+2)}")
    e(f"v_mov_b32 {vr(vT+3)}, 0")
    e(f"ds_write_b32 {vr(vT+2)}, {vr(vT+3)}")
    e(f"v_lshrrev_b32 {vr(vT)}, 3, {vr(vLane)}")
    e(f"v_and_b32 {vr(vT+4)}, 7, {vr(vLane)}")
    e(f"v_lshrrev_b32 {vr(vT+2)}, 4, {vr(vLane)}")
    e(f"v_xor_b32 {vr(vT+3)}, {vr(vT+2)}, {vr(vT+4)}")
    e(f"v_lshlrev_b32 {vr(vT+3)}, 4, {vr(vT+3)}")
    e(f"v_lshl_add_u32 {vr(vQd)}, {vr(vT)}, 7, {vr(vT+3)}")
    e(f"v_xor_b32 {vr(vQd+1)}, 64, {vr(vQd)}")
    e(f"s_mul_i32 {sr(sT1)}, {sr(sSub)}, 98304")
    e(f"s_add_u32 {sr(sT1)}, {sr(sT1)}, {sr(sT0)}")
    e(f"s_mov_b32 {sr(S_Q+2)}, 98304")
    e(f"s_mov_b32 {sr(S_Q+3)}, 0x00020000")
    e("s_waitcnt lgkmcnt(0)")
    e(f"s_add_u32 {sr(S_Q)}, s4, {sr(sT1)}")
    e(f"s_addc_u32 {sr(S_Q+1)}, s5, 0")
    for i in range(NPB):
        e("s_barrier")

    def q_instr(i):
        if i % 4 == 0:
            e(f"s_mov_b32 {sr(sT3)}, {1024*i}")
            e(f"s_mov_b32 m0, {sr(sT3)}")
            e("s_nop 0")
        e(f"buffer_load_dwordx4 {vr(vQd+(i&1))}, {sr(S_Q,4)}, {sr(sT3)} offen offset:{1024*(i&3)} {opt.qpol} lds")

    qs = [int(x) for x in opt.qsched.split(",")]
    nq = 0
    for t in range(8):
        e("s_barrier")
        if t == 0:
            stamp(1)
        if t >= 5:
            lim = min(nq + qs[t - 5], 24 * (t - 4))
            while nq < lim:
                q_instr(nq)
                nq += 1
    stamp(2)
    e("s_barrier")
    stamp(3)
    stamp(6)
    stamp(7)
    e("s_waitcnt lgkmcnt(0)")
    QD = min(opt.qdepth, 63)
    posted = [0]
    tail = [0]

    def post(kb):
        kb = kb // 12 * 12
        if kb > posted[0]:
            e(f"v_mov_b32 {vr(vX)}, {kb}")
            e(f"{'ds_max_u32' if tail[0] else 'ds_write_b32'} {vr(vSy)}, {vr(vX)} offset:12")
            posted[0] = kb
    QG = opt.qgran
    landed = 0
    i = nq
    if opt.qpause:
        assert nq % 4 == 0 and QD % 4 == 0
        sQi = 12

        def q4():
            e(f"s_mov_b32 m0, {sr(sQi)}")
            e("s_nop 0")
            for k in range(4):
                e(f"buffer_load_dwordx4 {vr(vQd+(k&1))}, {sr(S_Q,4)}, {sr(sQi)} offen offset:{1024*k} {opt.qpol} lds")
            e(f"s_add_u32 {sr(sQi)}, {sr(sQi)}, 4096")
        e(f"s_mov_b32 {sr(sQi)}, {1024*nq}")
        g.label("L_QA")
        e(f"ds_read_b32 {vr(vX)}, {vr(vSy)} offset:8")
        e(f"s_lshr_b32 {sr(sT1)}, {sr(sQi)}, 10")
        e(f"s_sub_u32 {sr(sT1)}, {sr(sT1)}, {QD-4}")
        e(f"s_max_i32 {sr(sT1)}, {sr(sT1)}, 0")
        e(f"v_mov_b32 {vr(vX+1)}, {sr(sT1)}")
        e(f"s_waitcnt vmcnt({QD-4}) lgkmcnt(0)")
        e(f"ds_write_b32 {vr(vSy)}, {vr(vX+1)} offset:12")
        e(f"v_readfirstlane_b32 {sr(sT0)}, {vr(vX)}")
        e(f"s_and_b32 {sr(sT0)}, {sr(sT0)}, {opt.qpm}")
        e(f"s_bcnt1_i32_b32 {sr(sT0)}, {sr(sT0)}")
        e(f"s_cmp_ge_u32 {sr(sT0)}, {opt.qpause}")
        e("s_cbranch_scc1 L_QB")
        q4()
        e(f"s_cmp_lt_u32 {sr(sQi)}, 98304")
        e("s_cbranch_scc1 L_QA")
        e("s_branch L_QT")
        g.label("L_QB")
        stamp(6)
        g.label("L_QB2")
        e(f"ds_read_b32 {vr(vX)}, {vr(vSy)} offset:4")
        e(f"s_add_u32 {sr(sCnt)}, {sr(sCnt)}, 1")
        e("s_waitcnt lgkmcnt(0)")
        e(f"v_readfirstlane_b32 {sr(sT0)}, {vr(vX)}")
        e(f"s_cmp_ge_u32 {sr(sT0)}, {opt.qres}")
        e("s_cbranch_scc1 L_QC0")
        e(f"s_cmp_gt_u32 {sr(sCnt)}, {SPIN*20}")
        e("s_cbranch_scc0 L_QB2")
        g.label("L_QC0")
        stamp(7)
        if TS:
            e(f"s_lshr_b32 {sr(sCnt)}, {sr(sQi)}, 10")
        g.label("L_QC")
        if opt.qd2 < 63:
            e(f"s_lshr_b32 {sr(sT1)}, {sr(sQi)}, 10")
            e(f"s_sub_u32 {sr(sT1)}, {sr(sT1)}, {opt.qd2-4}")
            e(f"s_max_i32 {sr(sT1)}, {sr(sT1)}, 0")
            e(f"v_max_u32 {vr(vX+1)}, {sr(sT1)}, {vr(vX+1)}")
            e(f"s_waitcnt vmcnt({opt.qd2-4})")
            e(f"ds_write_b32 {vr(vSy)}, {vr(vX+1)} offset:12")
        q4()
        e(f"s_cmp_lt_u32 {sr(sQi)}, 98304")
        e("s_cbranch_scc1 L_QC")
        g.label("L_QT")
        i = 96
    while i < 96:
        n = min(QG, 96 - i)
        need = i + n - QD
        if need > landed:
            for kb in range(12, 97, 12):
                if landed < kb < need:
                    e(f"s_waitcnt vmcnt({min(63, i-kb)})")
                    post(kb)
            e(f"s_waitcnt vmcnt({min(63, i-need)})")
            landed = need
            post(landed)
        for k in range(n):
            q_instr(i + k)
        i += n
    stamp(4)
    tail[0] = 1
    e("s_mov_b64 exec, 1")
    for kb in range(36 if opt.qpause else 12, 97, 12):
        if kb > posted[0]:
            e(f"s_waitcnt vmcnt({min(63, 96-kb)})")
            post(kb)
    stamp(5)
    if TS:
        for i in range(8 if opt.qpause else 6, 12):
            stamp(i)
        e("s_branch L_TS")
    else:
        e("s_waitcnt lgkmcnt(0)")
        e("s_endpgm")

    c("---- poller")
    g.label("L_POLLER")
    vFl, vDb, vRd = 32, 33, 34
    e(f"v_lshlrev_b32 {vr(vFl)}, 2, {vr(vLane)}")
    e(f"v_mov_b32 {vr(vT+3)}, 0")
    e(f"s_lshl_b32 {sr(sT1)}, {sr(sH)}, 2")
    e(f"s_add_u32 {sr(sT1)}, {sr(sT1)}, 128")
    e(f"v_mov_b32 {vr(vDb)}, {sr(sT1)}")
    e(f"s_mov_b32 {sr(S_D+2)}, 256")
    e(f"s_mov_b32 {sr(S_D+3)}, 0x00020000")
    e("s_waitcnt lgkmcnt(0)")
    flag_srd()
    e(f"s_mov_b32 {sr(S_D)}, s16")
    e(f"s_mov_b32 {sr(S_D+1)}, s17")
    if opt.warm & 2:
        c("pull this workgroup's share of the code into L2")
        e(f"s_getpc_b64 {sr(S_KV,2)}")
        g.label("L_PC")
        e(f"s_mul_i32 {sr(sT1)}, {sr(sSub)}, ((L_END-{NAME}_kernel+4+511)/512)*64")
        e(f"s_sub_u32 {sr(S_KV)}, {sr(S_KV)}, L_PC-{NAME}_kernel")
        e(f"s_subb_u32 {sr(S_KV+1)}, {sr(S_KV+1)}, 0")
        e(f"s_mov_b32 {sr(S_KV+2)}, L_END-{NAME}_kernel+4")
        e(f"s_mov_b32 {sr(S_KV+3)}, 0x00020000")
        e(f"v_lshl_add_u32 {vr(40)}, {vr(vLane)}, 6, {sr(sT1)}")
        e(f"buffer_load_dword {vr(41)}, {vr(40)}, {sr(S_KV,4)}, 0 offen")
    if opt.warm & 1:
        c("touch the pages used later (address translation warm-up)")
        e(f"s_mul_i32 {sr(sT1)}, {sr(sSub)}, 98304")
        e(f"s_add_u32 {sr(sT1)}, {sr(sT1)}, {sr(sT0)}")
        e(f"s_add_u32 {sr(S_O)}, s14, {sr(sT1)}")
        e(f"s_addc_u32 {sr(S_O+1)}, s15, 0")
        e(f"s_mov_b32 {sr(S_O+2)}, 98304")
        e(f"s_mov_b32 {sr(S_O+3)}, 0x00020000")
        e(f"s_add_u32 {sr(S_Q)}, s4, {sr(sT1)}")
        e(f"s_addc_u32 {sr(S_Q+1)}, s5, 0")
        e(f"s_mov_b32 {sr(S_Q+2)}, 98304")
        e(f"s_mov_b32 {sr(S_Q+3)}, 0x00020000")
        e(f"s_mul_i32 {sr(sT1)}, {sr(sH)}, 98304")
        e(f"s_add_u32 {sr(S_P)}, s18, {sr(sT1)}")
        e(f"s_addc_u32 {sr(S_P+1)}, s19, 0")
        e(f"s_mov_b32 {sr(S_P+2)}, 98304")
        e(f"s_mov_b32 {sr(S_P+3)}, 0x00020000")
        e(f"v_lshlrev_b32 {vr(42)}, {opt.wsh}, {vr(vLane)}")

    def tlbwarm():
        e("s_mov_b64 exec, -1")
        e(f"buffer_load_dword {vr(43)}, {vr(42)}, {sr(S_P,4)}, 0 offen sc1")
        e(f"buffer_load_dword {vr(44)}, {vr(42)}, {sr(S_O,4)}, 0 offen sc1")
        e(f"buffer_load_dword {vr(45)}, {vr(42)}, {sr(S_Q,4)}, 0 offen nt")
        e(f"buffer_load_dword {vr(46)}, {vr(vFl)}, {sr(S_F,4)}, 0 offen sc1")
        e(f"s_load_dword s3, {sr(S_F,2)}, 2048")
    if (opt.warm & 1) and opt.wt < 0:
        tlbwarm()
    if opt.warm & 4:
        c("pull a share of E / F into L2")
        e(f"s_lshr_b32 {sr(sT1)}, {sr(sH)}, 3")
        e(f"s_and_b32 {sr(sT2)}, {sr(sSub)}, 3")
        e(f"s_lshl2_add_u32 {sr(sT1)}, {sr(sT2)}, {sr(sT1)}")
        e(f"s_lshl_b32 {sr(sT1)}, {sr(sT1)}, 14")
        e(f"s_cmp_lt_u32 {sr(sSub)}, 4")
        e(f"s_cselect_b32 {sr(S_E)}, s10, s12")
        e(f"s_cselect_b32 {sr(S_E+1)}, s11, s13")
        e(f"s_mov_b32 {sr(S_E+2)}, 262144")
        e(f"s_mov_b32 {sr(S_E+3)}, 0x00020000")
        e(f"v_lshl_add_u32 {vr(47)}, {vr(vLane)}, 6, {sr(sT1)}")

    def ewarm():
        m = ((1 << 32) - 1) & ~((1 << (4 * opt.ew0)) - 1)
        e(f"s_mov_b32 exec_lo, 0x{m:x}")
        e(f"s_mov_b32 exec_hi, 0x{m:x}")
        for i in range(4):
            if i:
                e(f"s_movk_i32 {sr(sT2)}, {4096*i}")
            e(f"buffer_load_dword {vr(48+i)}, {vr(47)}, {sr(S_E,4)}, {sr(sT2) if i else 0} offen")
        e("s_mov_b64 exec, -1")
    if (opt.warm & 4) and opt.ewt < 0:
        ewarm()
    e(f"s_cmp_lg_u32 {sr(sSub)}, 0")
    e("s_cbranch_scc1 L_NOCLR")
    e(f"buffer_store_dword {vr(vT+3)}, {vr(vFl)}, {sr(S_F,4)}, 0 offen sc1")
    g.label("L_NOCLR")
    for i in range(NPB):
        e("s_barrier")
        if (opt.warm & 4) and opt.ewt == i:
            ewarm()
    e("s_mov_b64 exec, 1")

    def signal():
        e(f"s_cmp_lg_u32 {sr(sSub)}, 0")
        e("s_cbranch_scc1 L_NOSIG")
        e("s_waitcnt vmcnt(0)")
        e(f"buffer_store_dword {vr(vOne)}, {vr(vDb)}, {sr(S_D,4)}, 0 offen sc1")
        g.label("L_NOSIG")
    if opt.sigt < 0:
        signal()
    for t in range(8):
        e("s_barrier")
        if t == 0:
            stamp(1)
        if t == opt.sigt:
            signal()
        if (opt.warm & 1) and opt.wt == t:
            tlbwarm()
            e("s_mov_b64 exec, 1")
        if t == 4:
            e(f"buffer_load_dword {vr(vRd)}, {vr(vDb)}, {sr(S_D,4)}, 0 offen sc1")
    g.label("L_CHK")
    e("s_waitcnt vmcnt(0)")
    e(f"v_readfirstlane_b32 {sr(sT0)}, {vr(vRd)}")
    e(f"s_cmp_eq_u32 {sr(sT0)}, 1")
    e("s_cbranch_scc1 L_CHK_DONE")
    e(f"s_add_u32 {sr(sCnt)}, {sr(sCnt)}, 1")
    e(f"s_cmp_gt_u32 {sr(sCnt)}, {SPIN}")
    e("s_cbranch_scc1 L_CHK_DONE")
    e("s_sleep 4")
    e(f"buffer_load_dword {vr(vRd)}, {vr(vDb)}, {sr(S_D,4)}, 0 offen sc1")
    e("s_branch L_CHK")
    g.label("L_CHK_DONE")
    stamp(2)
    e("s_barrier")
    stamp(3)
    e(f"s_mov_b32 {sr(sCnt)}, 0")
    e(f"s_mov_b32 {sr(sMask)}, 0")
    e(f"s_mov_b64 exec, {-1 if WF else 0xff}")
    if opt.pdelay:
        c("first poll once this workgroup's own stores have drained")
        g.label("L_PD")
        e(f"ds_read_b32 {vr(vX)}, {vr(vSy)}")
        e(f"s_add_u32 {sr(sCnt)}, {sr(sCnt)}, 1")
        e("s_waitcnt lgkmcnt(0)")
        e(f"v_readfirstlane_b32 {sr(sT0)}, {vr(vX)}")
        e(f"s_cmp_ge_u32 {sr(sT0)}, {opt.pdelay}")
        e("s_cbranch_scc1 L_PD_DONE")
        e(f"s_cmp_gt_u32 {sr(sCnt)}, {SPIN*20}")
        e("s_cbranch_scc0 L_PD")
        g.label("L_PD_DONE")
        e(f"s_mov_b32 {sr(sCnt)}, 0")
    g.label("L_POLL")
    if opt.spoll:
        e(f"s_load_dwordx8 s[20:27], {sr(S_F,2)}, 0 glc")
    else:
        e(f"buffer_load_dword {vr(vRd)}, {vr(vFl)}, {sr(S_F,4)}, 0 offen sc1")
    e(f"s_add_u32 {sr(sCnt)}, {sr(sCnt)}, 1")
    e(f"s_cmp_gt_u32 {sr(sCnt)}, {SPIN}")
    e(f"s_cselect_b32 {sr(sT1)}, 0xff, {sr(sMask) if opt.spoll else 0}")
    if opt.spoll:
        c("device-scope vector poll as well once the fast polls have not finished the job")
        e(f"s_cmp_lt_u32 {sr(sCnt)}, {opt.vfall}")
        e("s_cbranch_scc1 L_POLL_S")
        e(f"buffer_load_dword {vr(vRd)}, {vr(vFl)}, {sr(S_F,4)}, 0 offen sc1")
        e("s_waitcnt vmcnt(0)")
        e(f"v_cmp_eq_u32 vcc, 1, {vr(vRd)}")
        e("s_nop 1")
        e(f"s_or_b32 {sr(sT1)}, {sr(sT1)}, vcc_lo")
        g.label("L_POLL_S")
        e("s_waitcnt lgkmcnt(0)")
        for j in range(8):
            e(f"s_cmp_eq_u32 s{20+j}, 1")
            e(f"s_cselect_b32 s{20+j}, {1<<j}, 0")
            e(f"s_or_b32 {sr(sT1)}, {sr(sT1)}, s{20+j}")
        e(f"s_mov_b32 {sr(sT0)}, {sr(sT1)}")
    else:
        e("s_waitcnt vmcnt(0)")
        e(f"v_cmp_eq_u32 vcc, 1, {vr(vRd)}")
    if opt.spoll:
        pass
    elif WF:
        c("byte-wise AND reduction of the 64 wave flags")
        e(f"s_lshr_b64 {sr(sT2+1,2) if False else 's[12:13]'}, vcc, 4")
        e("s_and_b64 s[12:13], s[12:13], vcc")
        e("s_lshr_b64 s[14:15], s[12:13], 2")
        e("s_and_b64 s[12:13], s[12:13], s[14:15]")
        e("s_lshr_b64 s[14:15], s[12:13], 1")
        e("s_and_b64 s[12:13], s[12:13], s[14:15]")
        for r_ in (12, 13):
            e(f"s_and_b32 s{r_}, s{r_}, 0x01010101")
            e(f"s_mul_i32 s{r_}, s{r_}, 0x01020408")
            e(f"s_bfe_u32 s{r_}, s{r_}, 0x40018")
        e("s_lshl4_add_u32 s12, s13, s12")
        e(f"s_or_b32 {sr(sT0)}, {sr(sT1)}, s12")
    else:
        e("s_nop 1")
        e(f"s_or_b32 {sr(sT0)}, {sr(sT1)}, vcc_lo")
    e(f"s_cmp_eq_u32 {sr(sT0)}, {sr(sMask)}")
    e("s_cbranch_scc1 L_POLL_SAME")
    e(f"v_mov_b32 {vr(vX)}, {sr(sT0)}")
    e(f"ds_write_b32 {vr(vSy)}, {vr(vX)} offset:8")
    if TS:
        e(f"s_cmp_lg_u32 {sr(sMask)}, 0")
        e("s_cbranch_scc1 L_POLL_NOTS")
        stamp(4)
        g.label("L_POLL_NOTS")
    e(f"s_mov_b32 {sr(sMask)}, {sr(sT0)}")
    e(f"s_cmp_eq_u32 {sr(sMask)}, 0xff")
    e("s_cbranch_scc1 L_POLL_DONE")
    g.label("L_POLL_SAME")
    if opt.psleep:
        e(f"s_sleep {opt.psleep}")
    e("s_branch L_POLL")
    g.label("L_POLL_DONE")
    if TS:
        for i in range(5, 12):
            stamp(i)
        g.label("L_TS")
        e("s_waitcnt lgkmcnt(0)")
        if opt.diag:
            di, dw, dwg = [int(x) for x in opt.diag.split(",")]
            e(f"s_cmp_lg_u32 {sr(sW)}, {dw}")
            e("s_cbranch_scc1 L_END")
            if dwg >= 0:
                e(f"s_cmp_lg_u32 s2, {dwg}")
                e("s_cbranch_scc1 L_END")
            e(f"s_add_u32 s3, {sr(sTS+2*di)}, 4000")
            g.label("L_DIAG")
            e("s_sleep 1")
            e("s_memrealtime s[12:13]")
            e("s_waitcnt lgkmcnt(0)")
            e("s_sub_u32 s12, s12, s3")
            e("s_cmp_lt_i32 s12, 0")
            e("s_cbranch_scc1 L_DIAG")
            e("s_branch L_END")
        c("records: waves 0, 7, 8, 9")
        e(f"s_sub_u32 s3, {sr(sW)}, 6")
        e(f"s_cmp_eq_u32 {sr(sW)}, 0")
        e("s_cselect_b32 s3, 0, s3")
        e("s_cselect_b32 s12, 7, s44")
        e("s_cmp_lt_u32 s12, 7")
        e("s_cbranch_scc1 L_END")
        e(f"s_add_u32 {sr(S_P)}, s18, 0x1000000")
        e(f"s_addc_u32 {sr(S_P+1)}, s19, 0")
        e(f"s_mov_b32 {sr(S_P+2)}, 0x20000")
        e(f"s_mov_b32 {sr(S_P+3)}, 0x00020000")
        e("s_mov_b64 exec, 1")
        e(f"s_lshl_b32 {sr(sT0)}, s3, 7")
        e("s_lshl_b32 s3, s2, 9")
        e(f"s_add_u32 s3, s3, {sr(sT0)}")
        e(f"v_mov_b32 {vr(vT)}, s3")
        e(f"s_mov_b32 {sr(sTS+24)}, 0")
        e(f"s_mov_b32 {sr(sTS+25)}, {sr(sCnt)}")
        for i in range(13):
            e(f"v_mov_b32 {vr(vT+2)}, {sr(sTS+2*i)}")
            e(f"v_mov_b32 {vr(vT+3)}, {sr(sTS+2*i+1)}")
            e(f"buffer_store_dwordx2 {vr(vT+2,2)}, {vr(vT)}, {sr(S_P,4)}, 0 offen offset:{8*i}")
            e("s_nop 1")
    else:
        e("s_waitcnt lgkmcnt(0)")
    g.label("L_END")
    e("s_endpgm")

    return HEADER.format(n=NAME) + "\n".join(g.lines) + FOOTER.format(n=NAME, vgpr=160, acc=160)


if __name__ == "__main__":
    ap = argparse.ArgumentParser()
    ap.add_argument("-o", default=f"cdna_kernels/{NAME}.s")
    ap.add_argument("--ts", type=int, default=0)
    ap.add_argument("--qsched", default="24,0,0")
    ap.add_argument("--qdepth", type=int, default=24)
    ap.add_argument("--qgran", type=int, default=1)
    ap.add_argument("--pbar", type=int, default=1)
    ap.add_argument("--psleep", type=int, default=1)
    ap.add_argument("--pdelay", type=int, default=0)
    ap.add_argument("--wflag", type=int, default=0)
    ap.add_argument("--vearly", type=int, default=1)
    ap.add_argument("--kpol", default="nt")
    ap.add_argument("--qpause", type=int, default=0)
    ap.add_argument("--qpm", type=lambda x: int(x, 0), default=0xff)
    ap.add_argument("--qres", type=int, default=8)
    ap.add_argument("--qd2", type=int, default=63)
    ap.add_argument("--ppol", default="sc1")
    ap.add_argument("--fpol", default="sc1")
    ap.add_argument("--spoll", type=int, default=0)
    ap.add_argument("--stpol", default="sc1")
    ap.add_argument("--warm", type=int, default=0)
    ap.add_argument("--wsh", type=int, default=12)
    ap.add_argument("--diag", default="")
    ap.add_argument("--sigt", type=int, default=-1)
    ap.add_argument("--smid", type=int, default=4)
    ap.add_argument("--k3late", type=int, default=0)
    ap.add_argument("--ewt", type=int, default=-1)
    ap.add_argument("--ew0", type=int, default=0)
    ap.add_argument("--wt", type=int, default=-1)
    ap.add_argument("--qpol", default="nt")
    ap.add_argument("--vfall", type=int, default=12)
    opt = ap.parse_args()
    open(opt.o, "w").write(gen(opt))
```

```python
import sys, math, argparse, struct

NAME = "standalone__low_rank_proj_linformer__prompt"

HEADER = """; Kernarg layout for this problem (64 bytes, ptrs only, base s[0:1]):
; @launch grid=(256,1,1) block=(640,1,1) lds=163840
.amdgcn_target "amdgcn-amd-amdhsa--gfx950"
.text
.globl {n}_kernel
.p2align 8
.type {n}_kernel,@function
{n}_kernel:
"""

FOOTER = """
.section .rodata,"a"
.p2align 6
.amdhsa_kernel {n}_kernel
  .amdhsa_next_free_vgpr {vgpr}
  .amdhsa_next_free_sgpr 102
  .amdhsa_accum_offset {acc}
  .amdhsa_group_segment_fixed_size 0
  .amdhsa_kernarg_size 64
  .amdhsa_user_sgpr_count 2
  .amdhsa_user_sgpr_kernarg_segment_ptr 1
  .amdhsa_system_sgpr_workgroup_id_x 1
.end_amdhsa_kernel
"""


class G:
    def __init__(self):
        self.lines = []

    def e(self, s):
        self.lines.append("    " + s)

    def c(self, s):
        self.lines.append("    ; " + s)

    def label(self, s):
        self.lines.append(s + ":")


def vr(a, n=1):
    return f"v{a}" if n == 1 else f"v[{a}:{a+n-1}]"


def sr(a, n=1):
    return f"s{a}" if n == 1 else f"s[{a}:{a+n-1}]"


def gen(opt):
    g = G()
    e, c = g.e, g.c
    TS = opt.ts
    SPIN = 400000
    WF = opt.wflag
    assert not (WF and opt.pdelay)

    S_KV, S_E, S_Q, S_O, S_P, S_D = 20, 24, 28, 32, 36, 40
    sW, sH, sSub, sT, sNH = 44, 45, 46, 47, 48
    sT0, sT1, sT2, sT3 = 49, 50, 51, 52
    sRT, sCG = 53, 54
    sLO, sHI = 55, 56
    sC = 57
    sI = 58
    sM0K, sM0E = 62, 63
    sCnt = 64
    sCnt2 = 65
    sTS = 66
    sDH = 92
    sNeed = 93
    sXm = 94
    S_F = 96
    sRot = 100
    sPo = 4
    sIss, sNew, sMask, sMask2 = 7, 8, 9, 10

    vLane = 1
    vSy, vOne, vG, vGw, vFr, vOr, vOg = 2, 3, 4, 5, 6, 7, 8
    vOw = 9
    vX = 14
    vQa = 16
    vK = 32
    vE = 35
    vEa = 36
    vKa = 38
    vPo = 44
    vFo = 45
    vAcc = 48
    vEf = 60
    vKf = 76
    vPk = 124
    vT = 132

    IMG = 98304
    SYNC = 147456
    uid = [0]

    def newlab(p):
        uid[0] += 1
        return f"L_{p}_{uid[0]}"

    def stamp(i):
        if TS == 2 and 4 <= i <= 9:
            return
        if TS:
            e(f"s_memrealtime {sr(sTS+2*i,2)}")

    def stamp2(i):
        if TS == 2:
            e(f"s_memrealtime {sr(sTS+2*i,2)}")

    e("s_cmp_ge_u32 s2, 256")
    e("s_cbranch_scc1 L_END")
    stamp(0)
    e("s_load_dwordx16 s[4:19], s[0:1], 0")
    e(f"v_and_b32 {vr(vLane)}, 63, v0")
    e(f"v_lshrrev_b32 {vr(vT)}, 6, v0")
    e(f"s_and_b32 {sr(sH)}, s2, 31")
    e(f"v_readfirstlane_b32 {sr(sW)}, {vr(vT)}")
    e(f"s_lshr_b32 {sr(sSub)}, s2, 5")
    e(f"v_mul_u32_u24 {vr(vT+2)}, 171, {vr(vLane)}")
    e(f"v_lshlrev_b32 {vr(vT+1)}, 4, {vr(vLane)}")
    e(f"s_mul_i32 {sr(sT0)}, {sr(sH)}, 786432")
    e(f"s_cmp_ge_u32 {sr(sW)}, 8")
    e("s_cbranch_scc1 L_HELP")
    e(f"s_movk_i32 {sr(sT3)}, 192")
    e(f"s_lshr_b32 {sr(sT)}, {sr(sSub)}, 2")
    e(f"s_bfe_u32 {sr(sNH)}, {sr(sSub)}, 0x10001")
    e(f"s_and_b32 {sr(sDH)}, {sr(sSub)}, 1")
    e(f"v_lshrrev_b32 {vr(vT+3)}, 11, {vr(vT+2)}")
    e(f"v_mad_u32_u24 {vr(vK)}, {vr(vT+3)}, {sr(sT3)}, {vr(vT+1)}")
    e(f"v_add_u32 {vr(vT+3)}, 10944, {vr(vT+2)}")
    e(f"v_lshrrev_b32 {vr(vT+3)}, 11, {vr(vT+3)}")
    e(f"v_and_b32 {vr(vT+4)}, 32, {vr(vLane)}")
    e(f"v_xor_b32 {vr(vT+4)}, {vr(vT+4)}, {vr(vT+1)}")
    e(f"v_mad_u32_u24 {vr(vK+1)}, {vr(vT+3)}, {sr(sT3)}, {vr(vT+4)}")
    e(f"v_add_u32 {vr(vT+3)}, 21888, {vr(vT+2)}")
    e(f"v_lshrrev_b32 {vr(vT+3)}, 11, {vr(vT+3)}")
    e(f"v_xor_b32 {vr(vT+4)}, 32, {vr(vT+1)}")
    e(f"v_mad_u32_u24 {vr(vK+2)}, {vr(vT+3)}, {sr(sT3)}, {vr(vT+4)}")
    c("K/V source offset: h*786432 + nh*393216 + dh*192 + w*6144")
    e(f"s_mul_i32 {sr(sM0K)}, {sr(sW)}, 3072")
    e(f"s_mul_i32 {sr(sT2)}, {sr(sDH)}, 192")
    e(f"s_lshl1_add_u32 {sr(sT2)}, {sr(sM0K)}, {sr(sT2)}")
    e(f"s_mul_i32 {sr(sT1)}, {sr(sNH)}, 393216")
    e(f"s_add_u32 {sr(sT1)}, {sr(sT1)}, {sr(sT0)}")
    e(f"s_add_u32 {sr(sT1)}, {sr(sT1)}, {sr(sT2)}")
    e(f"s_sub_u32 {sr(S_KV+2)}, 393216, {sr(sT2)}")
    e(f"s_mov_b32 {sr(S_KV+3)}, 0x00020000")
    c("E pattern")
    e(f"v_lshrrev_b32 {vr(vT)}, 3, {vr(vLane)}")
    e(f"s_lshl_b32 {sr(sT2)}, {sr(sW)}, 3")
    e(f"v_add_u32 {vr(vT+2)}, {sr(sT2)}, {vr(vT)}")
    e(f"v_bfe_u32 {vr(vT+3)}, {vr(vT+2)}, 1, 3")
    e(f"v_and_b32 {vr(vT+4)}, 7, {vr(vLane)}")
    e(f"v_xor_b32 {vr(vT+3)}, {vr(vT+3)}, {vr(vT+4)}")
    e(f"v_lshlrev_b32 {vr(vT+3)}, 4, {vr(vT+3)}")
    e(f"v_lshl_add_u32 {vr(vE)}, {vr(vT+2)}, 12, {vr(vT+3)}")
    e(f"s_lshl_b32 {sr(sM0E)}, {sr(sW)}, 10")
    e(f"s_add_u32 {sr(sM0E)}, {sr(sM0E)}, {IMG}")
    e(f"s_lshl_b32 {sr(sT2)}, {sr(sNH)}, 11")
    e(f"s_sub_u32 {sr(S_E+2)}, 262144, {sr(sT2)}")
    e(f"s_mov_b32 {sr(S_E+3)}, 0x00020000")
    if opt.rot == 1:
        c("tile order rotated per (head group, tensor): 256*(2*(h>>3)+T)")
        e(f"s_lshr_b32 {sr(sRot)}, {sr(sH)}, 3")
        e(f"s_lshl1_add_u32 {sr(sRot)}, {sr(sRot)}, {sr(sT)}")
        e(f"s_lshl_b32 {sr(sRot)}, {sr(sRot)}, 8")
    elif opt.rot == 2:
        e(f"s_lshr_b32 {sr(sRot)}, {sr(sH)}, 3")
        e(f"s_lshl1_add_u32 {sr(sRot)}, {sr(sRot)}, {sr(sDH)}")
        e(f"s_lshl_b32 {sr(sRot)}, {sr(sRot)}, 8")
    elif opt.rot == 3:
        e(f"s_lshr_b32 {sr(sRot)}, {sr(sH)}, 3")
        e(f"s_lshl1_add_u32 {sr(sRot)}, {sr(sRot)}, {sr(sT)}")
        e(f"s_add_u32 {sr(sRot)}, {sr(sRot)}, {sr(sH)}")
        e(f"s_and_b32 {sr(sRot)}, {sr(sRot)}, 7")
        e(f"s_lshl_b32 {sr(sRot)}, {sr(sRot)}, 8")
    elif opt.rot == 4:
        e(f"s_and_b32 {sr(sRot)}, {sr(sH)}, 7")
        e(f"s_lshl_b32 {sr(sRot)}, {sr(sRot)}, 8")
    stamp2(4)
    e(f"s_cmp_eq_u32 {sr(sT)}, 0")
    e("s_waitcnt lgkmcnt(0)")
    stamp2(5)
    e(f"s_cselect_b32 {sr(S_KV)}, s6, s8")
    e(f"s_cselect_b32 {sr(S_KV+1)}, s7, s9")
    e(f"s_cselect_b32 {sr(S_E)}, s10, s12")
    e(f"s_cselect_b32 {sr(S_E+1)}, s11, s13")
    e(f"s_add_u32 {sr(S_KV)}, {sr(S_KV)}, {sr(sT1)}")
    e(f"s_addc_u32 {sr(S_KV+1)}, {sr(S_KV+1)}, 0")
    e(f"s_add_u32 {sr(S_E)}, {sr(S_E)}, {sr(sT2)}")
    e(f"s_addc_u32 {sr(S_E+1)}, {sr(S_E+1)}, 0")

    vq = []

    def issue_k(t, q):
        e(f"s_add_u32 m0, {sr(sM0K)}, {24576*(t%4)}")
        if opt.rot:
            if t == 0:
                e(f"s_mul_i32 {sr(sT3)}, {sr(sRot)}, 192")
            else:
                e(f"s_add_u32 {sr(sT3)}, {sr(sRot)}, {256*t}")
                e(f"s_and_b32 {sr(sT3)}, {sr(sT3)}, 2047")
                e(f"s_mul_i32 {sr(sT3)}, {sr(sT3)}, 192")
        else:
            e(f"s_mov_b32 {sr(sT3)}, {49152*t}")
        for i in range(3):
            e(f"buffer_load_dwordx4 {vr(vK+i)}, {sr(S_KV,4)}, {sr(sT3)} offen offset:{1024*i} {opt.kpol} lds")
        q.extend([t] * 3)

    def issue_e(t, q):
        if opt.xe == 0 and t >= 3:
            return
        for st in range(2):
            e(f"s_add_u32 m0, {sr(sM0E)}, {16384*(t%3)+8192*st}")
            if opt.rot:
                if st == 0:
                    e(f"s_add_u32 {sr(sT3)}, {sr(sRot)}, {256*t}")
                    e(f"s_and_b32 {sr(sT3)}, {sr(sT3)}, 2047")
                else:
                    e(f"s_add_u32 {sr(sT3)}, {sr(sT3)}, 128")
            else:
                e(f"s_movk_i32 {sr(sT3)}, {256*t+128*st}")
            if opt.xe == 2:
                e(f"s_movk_i32 {sr(sT2)}, {256*((t+4)%8)+128*st}")
                e(f"buffer_load_dwordx4 {vr(vE)}, {sr(S_E,4)}, {sr(sT2)} offen lds")
                q.append(t)
            e(f"buffer_load_dwordx4 {vr(vE)}, {sr(S_E,4)}, {sr(sT3)} offen lds")
        q.extend([t] * 2)

    NPB = (2 if opt.k3late else 3) if opt.pbar else 0

    def initial(ts_):
        for t in ts_:
            if t == 3 and opt.k3late:
                continue
            issue_k(t, vq)
            if t < 3:
                issue_e(t, vq)
                if t == 0:
                    stamp2(6)
                if t < NPB:
                    e("s_barrier")
    initial(range(opt.smid))
    if opt.smid == 4:
        stamp2(7)

    c("remaining SRDs")
    e(f"s_and_b32 {sr(sRT)}, {sr(sW)}, 3")
    e(f"s_lshr_b32 {sr(sCG)}, {sr(sW)}, 2")
    e(f"s_mul_i32 {sr(sT1)}, {sr(sSub)}, 98304")
    e(f"s_add_u32 {sr(sT1)}, {sr(sT1)}, {sr(sT0)}")
    e(f"s_add_u32 {sr(S_O)}, s14, {sr(sT1)}")
    e(f"s_addc_u32 {sr(S_O+1)}, s15, 0")
    e(f"s_mov_b32 {sr(S_O+2)}, 98304")
    e(f"s_mov_b32 {sr(S_O+3)}, 0x00020000")
    e(f"s_mul_i32 {sr(sT1)}, {sr(sH)}, 98304")
    e(f"s_add_u32 {sr(S_P)}, s18, {sr(sT1)}")
    e(f"s_addc_u32 {sr(S_P+1)}, s19, 0")
    e(f"s_mov_b32 {sr(S_P+2)}, 98304")
    e(f"s_mov_b32 {sr(S_P+3)}, 0x00020000")

    def flag_srd():
        e(f"s_mul_i32 {sr(sT1)}, {sr(sH)}, 4352")
        e(f"s_add_u32 {sr(sT1)}, {sr(sT1)}, 0x800000")
        e(f"s_add_u32 {sr(S_F)}, s18, {sr(sT1)}")
        e(f"s_addc_u32 {sr(S_F+1)}, s19, 0")
        e(f"s_mov_b32 {sr(S_F+2)}, {256 if WF else 32}")
        e(f"s_mov_b32 {sr(S_F+3)}, 0x00020000")
    flag_srd()
    e(f"s_mov_b32 {sr(sLO)}, 0x00003f80")
    e(f"s_mov_b32 {sr(sHI)}, 0x3f800000")
    cst = math.log2(math.e) / math.sqrt(192.0)
    e(f"s_mov_b32 {sr(sC)}, 0x{struct.unpack('<I', struct.pack('<f', cst))[0]:08x}")
    for i in range(4):
        e(f"s_mov_b32 {sr(sI+i)}, {3072*i}")
    e(f"v_mov_b32 {vr(vSy)}, {SYNC}")
    e(f"v_mov_b32 {vr(vOne)}, 1")
    if WF:
        e(f"s_lshl_b32 {sr(sT1)}, {sr(sSub)}, 3")
        e(f"s_add_u32 {sr(sT1)}, {sr(sT1)}, {sr(sW)}")
        e(f"s_lshl_b32 {sr(sT1)}, {sr(sT1)}, 2")
    else:
        e(f"s_lshl_b32 {sr(sT1)}, {sr(sSub)}, 2")
    e(f"v_mov_b32 {vr(vFo)}, {sr(sT1)}")

    c("E frag addrs")
    e(f"v_lshrrev_b32 {vr(vT+2)}, 4, {vr(vLane)}")
    e(f"v_and_b32 {vr(vT+3)}, 15, {vr(vLane)}")
    e(f"v_lshrrev_b32 {vr(vT+5)}, 1, {vr(vT+3)}")
    e(f"v_xor_b32 {vr(vT+5)}, {vr(vT+5)}, {vr(vT+2)}")
    e(f"v_lshlrev_b32 {vr(vT+5)}, 4, {vr(vT+5)}")
    e(f"v_lshl_add_u32 {vr(vT+5)}, {vr(vT+3)}, 7, {vr(vT+5)}")
    e(f"s_lshl_b32 {sr(sT1)}, {sr(sRT)}, 11")
    e(f"s_add_u32 {sr(sT1)}, {sr(sT1)}, {IMG}")
    e(f"v_add_u32 {vr(vEa)}, {sr(sT1)}, {vr(vT+5)}")
    e(f"v_xor_b32 {vr(vEa+1)}, 64, {vr(vEa)}")

    c("K frag addrs: column tiles (4cg, 4cg+1, 2+cg)")
    e(f"v_bfe_u32 {vr(vT+5)}, {vr(vLane)}, 2, 2")
    e(f"v_lshl_add_u32 {vr(vT+5)}, {vr(vT+2)}, 3, {vr(vT+5)}")
    e(f"v_mul_u32_u24 {vr(vT+5)}, 192, {vr(vT+5)}")
    e(f"v_and_b32 {vr(vT+6)}, 3, {vr(vLane)}")
    e(f"v_lshl_add_u32 {vr(vT+5)}, {vr(vT+6)}, 3, {vr(vT+5)}")
    e(f"v_bfe_u32 {vr(vT+6)}, {vr(vLane)}, 4, 1")
    e(f"v_lshlrev_b32 {vr(vT+6)}, 5, {vr(vT+6)}")
    e(f"s_lshl_b32 {sr(sT1)}, {sr(sCG)}, 7")
    e(f"v_xad_u32 {vr(vKa)}, {vr(vT+6)}, {sr(sT1)}, {vr(vT+5)}")
    e(f"v_xor_b32 {vr(vKa+1)}, 32, {vr(vKa)}")
    e(f"s_lshl_b32 {sr(sT1)}, {sr(sCG)}, 5")
    e(f"s_add_u32 {sr(sT1)}, {sr(sT1)}, 64")
    e(f"v_xad_u32 {vr(vKa+2)}, {vr(vT+6)}, {sr(sT1)}, {vr(vT+5)}")
    for a in range(3):
        e(f"v_add_u32 {vr(vKa+3+a)}, 49152, {vr(vKa+a)}")

    c("partial store voffset + soffsets")
    e(f"s_mul_i32 {sr(sT0)}, {sr(sSub)}, 12288")
    e(f"s_lshl_b32 {sr(sT2)}, {sr(sCG)}, 13")
    e(f"s_cmp_eq_u32 {sr(sT)}, 0")
    e("s_cbranch_scc0 L_PO_V")
    e(f"v_lshlrev_b32 {vr(vT+5)}, 4, {vr(vT+3)}")
    e(f"v_lshl_add_u32 {vr(vT+5)}, {vr(vT+6)}, 6, {vr(vT+5)}")
    e(f"v_lshrrev_b32 {vr(vT+6)}, 5, {vr(vLane)}")
    e(f"v_lshl_add_u32 {vr(vPo)}, {vr(vT+6)}, 9, {vr(vT+5)}")
    e(f"s_lshr_b32 {sr(sT1)}, {sr(sRT)}, 1")
    e(f"s_lshl_b32 {sr(sT1)}, {sr(sT1)}, 10")
    e(f"s_add_u32 {sr(sT0)}, {sr(sT0)}, {sr(sT1)}")
    e(f"s_and_b32 {sr(sT1)}, {sr(sRT)}, 1")
    e(f"s_lshl_b32 {sr(sT1)}, {sr(sT1)}, 8")
    e(f"s_add_u32 {sr(sT0)}, {sr(sT0)}, {sr(sT1)}")
    e(f"s_add_u32 {sr(sPo)}, {sr(sT0)}, {sr(sT2)}")
    e(f"s_lshl_b32 {sr(sT1)}, {sr(sCG)}, 11")
    e(f"s_add_u32 {sr(sT1)}, {sr(sT1)}, 4096")
    e(f"s_add_u32 {sr(sPo+1)}, {sr(sT0)}, {sr(sT1)}")
    e(f"s_mov_b32 {sr(sXm)}, 0xffff")
    e(f"s_mov_b32 {sr(sXm+1)}, 0xffff")
    e("s_branch L_PO_DONE")
    g.label("L_PO_V")
    e(f"v_and_b32 {vr(vT+5)}, 3, {vr(vLane)}")
    e(f"v_bfe_u32 {vr(vT+4)}, {vr(vLane)}, 2, 1")
    e(f"v_lshl_or_b32 {vr(vT+5)}, {vr(vT+4)}, 3, {vr(vT+5)}")
    e(f"v_bfe_u32 {vr(vT+4)}, {vr(vLane)}, 3, 1")
    e(f"v_lshl_or_b32 {vr(vT+5)}, {vr(vT+4)}, 2, {vr(vT+5)}")
    e(f"v_or_b32 {vr(vT+5)}, {vr(vT+5)}, {vr(vT+6)}")
    e(f"v_lshlrev_b32 {vr(vT+5)}, 4, {vr(vT+5)}")
    e(f"v_lshrrev_b32 {vr(vT+6)}, 5, {vr(vLane)}")
    e(f"v_lshl_add_u32 {vr(vPo)}, {vr(vT+6)}, 8, {vr(vT+5)}")
    e(f"s_lshl_b32 {sr(sT1)}, {sr(sRT)}, 10")
    e(f"s_add_u32 {sr(sT0)}, {sr(sT0)}, {sr(sT1)}")
    e(f"s_add_u32 {sr(sPo)}, {sr(sT0)}, {sr(sT2)}")
    e(f"s_lshl_b32 {sr(sT1)}, {sr(sCG)}, 8")
    e(f"s_add_u32 {sr(sT1)}, {sr(sT1)}, 4096")
    e(f"s_add_u32 {sr(sPo+1)}, {sr(sT0)}, {sr(sT1)}")
    e(f"s_mov_b32 {sr(sXm)}, -1")
    e(f"s_mov_b32 {sr(sXm+1)}, 0")
    g.label("L_PO_DONE")

    c("gather / frag addresses: 3 KiB contiguous per wave and partial image")
    e(f"v_lshlrev_b32 {vr(vFr)}, 4, {vr(vLane)}")
    e(f"v_add_u32 {vr(vG)}, {sr(sM0K)}, {vr(vFr)}")
    e(f"v_add_u32 {vr(vFr)}, {IMG}, {vr(vFr)}")
    e(f"v_add_u32 {vr(vGw)}, {sr(sM0K)}, {vr(vFr)}")

    c("Q frag addrs")
    e(f"s_mul_i32 {sr(sT1)}, {sr(sW)}, 12288")
    e(f"v_and_b32 {vr(vT+3)}, 31, {vr(vLane)}")
    e(f"v_lshrrev_b32 {vr(vT+2)}, 5, {vr(vLane)}")
    e(f"v_mul_u32_u24 {vr(vT+5)}, 3, {vr(vT+3)}")
    for L in range(3):
        e(f"v_add_u32 {vr(vT+6)}, {L}, {vr(vT+5)}")
        e(f"v_bfe_u32 {vr(vT+4)}, {vr(vT+6)}, 1, 3")
        e(f"v_xor_b32 {vr(vT+4)}, {vr(vT+4)}, {vr(vT+2)}")
        e(f"v_lshlrev_b32 {vr(vT+4)}, 4, {vr(vT+4)}")
        e(f"v_lshl_add_u32 {vr(vT+6)}, {vr(vT+6)}, 7, {sr(sT1)}")
        for s4 in range(4):
            if s4 == 0:
                e(f"v_add_u32 {vr(vQa+4*L)}, {vr(vT+4)}, {vr(vT+6)}")
            elif s4 < 3:
                e(f"v_xad_u32 {vr(vQa+4*L+s4)}, {vr(vT+4)}, {32*s4}, {vr(vT+6)}")
            else:
                e(f"v_xor_b32 {vr(vT+1)}, 96, {vr(vT+4)}")
                e(f"v_add_u32 {vr(vQa+4*L+s4)}, {vr(vT+1)}, {vr(vT+6)}")
    c("O staging addrs")
    e(f"v_and_b32 {vr(vT+4)}, 7, {vr(vT+3)}")
    e(f"v_xor_b32 {vr(vT+4)}, {vr(vT+4)}, {vr(vT+2)}")
    e(f"v_lshlrev_b32 {vr(vT+4)}, 4, {vr(vT+4)}")
    e(f"v_lshl_add_u32 {vr(vT+6)}, {vr(vT+5)}, 7, {sr(sT1)}")
    for c2 in range(4):
        if c2 == 0:
            e(f"v_add_u32 {vr(vOw)}, {vr(vT+4)}, {vr(vT+6)}")
        elif c2 < 3:
            e(f"v_xad_u32 {vr(vOw+c2)}, {vr(vT+4)}, {32*c2}, {vr(vT+6)}")
        else:
            e(f"v_xor_b32 {vr(vT+1)}, 96, {vr(vT+4)}")
            e(f"v_add_u32 {vr(vOw+c2)}, {vr(vT+1)}, {vr(vT+6)}")
    e(f"v_lshrrev_b32 {vr(vT)}, 3, {vr(vLane)}")
    e(f"v_and_b32 {vr(vT+4)}, 7, {vr(vLane)}")
    e(f"v_mul_u32_u24 {vr(vT+5)}, 384, {vr(vT)}")
    e(f"v_add_u32 {vr(vT+5)}, {sr(sT1)}, {vr(vT+5)}")
    e(f"v_lshl_add_u32 {vr(vOg)}, {vr(vT+4)}, 4, {vr(vT+5)}")
    e(f"v_xor_b32 {vr(vT+4)}, {vr(vT+4)}, {vr(vT)}")
    e(f"v_lshl_add_u32 {vr(vOr)}, {vr(vT+4)}, 4, {vr(vT+5)}")
    e(f"s_mul_i32 {sr(sNeed)}, {sr(sW)}, 12")
    e(f"s_add_u32 {sr(sNeed)}, {sr(sNeed)}, 12")
    e(f"s_mov_b32 {sr(sCnt)}, 0")
    e(f"s_mov_b32 {sr(sIss)}, 0")
    if opt.smid < 4:
        initial(range(opt.smid, 4))
        stamp2(7)

    pend = []

    def wait_for(tags):
        idx = max((pend.index(t_) for t_ in tags if t_ in pend), default=-1)
        if idx < 0:
            return
        after = len(pend) - idx - 1
        e(f"s_waitcnt lgkmcnt({min(15, after)})")
        del pend[:idx + 1]

    def acc(a):
        return vAcc + 4 * a

    def ef(ks):
        return vEf + 4 * ks

    def kf(a, ks):
        return vKf + (ks * 3 + a) * 4

    def phase1(isV):
        q = list(vq)
        for t in range(8):
            c(f"---- tile {t}")
            last = max(i for i, x in enumerate(q) if x == t)
            if t == 0:
                stamp2(8)
            e(f"s_waitcnt vmcnt({len(q)-last-1})")
            if t == 0:
                stamp2(9)
            e("s_barrier")
            if t == 0:
                stamp(1)
            if t >= 1:
                if t + 2 <= 7:
                    issue_e(t + 2, q)
                if t + 3 <= 7:
                    issue_k(t + 3, q)
            p = t % 4
            st, lo = p // 2, (p % 2) * 24576
            pend.clear()

            def reads(ks):
                e(f"ds_read_b128 {vr(ef(ks),4)}, {vr(vEa+(ks&1))} offset:{16384*(t%3)+8192*(ks>>1)}")
                pend.append(('e', ks))
                for a in range(3):
                    for hf in range(2):
                        e(f"ds_read_b64_tr_b16 {vr(kf(a,ks)+2*hf,2)}, {vr(vKa+3*st+a)} offset:{lo+6144*ks+768*hf}")
                        pend.append(('k', ks, a, hf))
            reads(0)
            reads(1)
            for ks in range(4):
                for a in range(3):
                    wait_for([('e', ks), ('k', ks, a, 0), ('k', ks, a, 1)])
                    cin = "0" if (t == 0 and ks == 0) else vr(acc(a), 4)
                    if isV:
                        e(f"v_mfma_f32_16x16x32_bf16 {vr(acc(a),4)}, {vr(ef(ks),4)}, {vr(kf(a,ks),4)}, {cin}")
                    else:
                        e(f"v_mfma_f32_16x16x32_bf16 {vr(acc(a),4)}, {vr(kf(a,ks),4)}, {vr(ef(ks),4)}, {cin}")
                if ks + 2 < 4:
                    reads(ks + 2)
                if t == 0 and opt.k3late and ks == opt.k3late - 1:
                    issue_k(3, q)
        stamp(2)
        c("---- epilogue: pack, swap, store partial")
        e("s_nop 6")
        op = "v_permlane32_swap_b32" if isV else "v_permlane16_swap_b32"
        for a in range(3):
            e(f"v_cvt_pk_bf16_f32 {vr(vPk+2*a)}, {vr(acc(a))}, {vr(acc(a)+1)}")
            e(f"v_cvt_pk_bf16_f32 {vr(vPk+2*a+1)}, {vr(acc(a)+2)}, {vr(acc(a)+3)}")
            if a == 1:
                e("s_nop 1")
                e(f"{op} {vr(vPk)}, {vr(vPk+2)}")
                e(f"{op} {vr(vPk+1)}, {vr(vPk+3)}")
        e(f"buffer_store_dwordx4 {vr(vPk,4)}, {vr(vPo)}, {sr(S_P,4)}, {sr(sPo)} offen {opt.ppol}")
        e("s_nop 0")
        e(f"{op} {vr(vPk+4)}, {vr(vPk+6)}")
        e(f"{op} {vr(vPk+5)}, {vr(vPk+7)}")
        e(f"s_mov_b64 exec, {sr(sXm,2)}")
        e("s_nop 0")
        e(f"buffer_store_dwordx4 {vr(vPk+4,4)}, {vr(vPo)}, {sr(S_P,4)}, {sr(sPo+1)} offen {opt.ppol}")

    e(f"s_cmp_eq_u32 {sr(sT)}, 0")
    e("s_cbranch_scc0 L_P1_V")
    phase1(False)
    e("s_branch L_P1_DONE")
    g.label("L_P1_V")
    phase1(True)
    g.label("L_P1_DONE")

    e("s_mov_b64 exec, 1")
    e("s_barrier")
    if not opt.eflag:
        e("s_waitcnt vmcnt(0)")
    stamp(3)
    if opt.eflag:
        pass
    elif WF:
        e(f"buffer_store_dword {vr(vOne)}, {vr(vFo)}, {sr(S_F,4)}, 0 offen {opt.fpol}")
    else:
        e(f"ds_add_rtn_u32 {vr(vX)}, {vr(vSy)}, {vr(vOne)}")
        e("s_waitcnt lgkmcnt(0)")
        e(f"v_readfirstlane_b32 {sr(sT0)}, {vr(vX)}")
        e(f"s_cmp_lg_u32 {sr(sT0)}, 7")
        e("s_cbranch_scc1 L_NOPUB")
        e(f"buffer_store_dword {vr(vOne)}, {vr(vFo)}, {sr(S_F,4)}, 0 offen {opt.fpol}")
        g.label("L_NOPUB")
    e("s_mov_b64 exec, -1")

    vGK, vGV = 32, 56
    vGt, vGp = 80, 104

    def gd(j, r):
        return vGK + j * 12 + r * 4

    def issue_g(js):
        for j in js:
            lab = newlab("GI")
            e(f"s_bitcmp1_b32 {sr(sNew)}, {2*j}")
            e(f"s_cbranch_scc0 {lab}")
            e(f"s_mov_b32 {sr(sT1)}, {j*24576}")
            if opt.xg and ((j & 1) or opt.xg == 2):
                e("s_mov_b64 exec, 1")
            for r in range(3):
                e(f"buffer_load_dwordx4 {vr(gd(j,r),4)}, {vr(vG)}, {sr(S_P,4)}, {sr(sT1)} offen offset:{1024*r} {opt.gpol}")
            if opt.xg and ((j & 1) or opt.xg == 2):
                e("s_mov_b64 exec, -1")
            g.label(lab)
        e(f"s_or_b32 {sr(sIss)}, {sr(sIss)}, {sr(sNew)}")

    g.label("L_GL")
    e(f"ds_read_b32 {vr(vX)}, {vr(vSy)} offset:8")
    e(f"s_add_u32 {sr(sCnt)}, {sr(sCnt)}, 1")
    e(f"s_cmp_gt_u32 {sr(sCnt)}, {SPIN*20}")
    e(f"s_cselect_b32 {sr(sT1)}, 0xff, 0")
    e("s_waitcnt lgkmcnt(0)")
    e(f"v_readfirstlane_b32 {sr(sT0)}, {vr(vX)}")
    e(f"s_or_b32 {sr(sT0)}, {sr(sT0)}, {sr(sT1)}")
    e(f"s_lshr_b32 {sr(sT0)}, {sr(sT0)}, {sr(sCG)}")
    e(f"s_and_b32 {sr(sT1)}, {sr(sT0)}, 5")
    e(f"s_and_b32 {sr(sT0)}, {sr(sT0)}, 0x55")
    e(f"s_cmp_eq_u32 {sr(sT1)}, 5")
    e(f"s_cselect_b32 {sr(sT0)}, {sr(sT0)}, {sr(sT1)}")
    e(f"s_andn2_b32 {sr(sNew)}, {sr(sT0)}, {sr(sIss)}")
    e("s_cbranch_scc1 L_GISSUE")
    if opt.psleep:
        e(f"s_sleep {opt.psleep}")
    e("s_branch L_GL")
    g.label("L_GISSUE")
    issue_g(range(4))
    e(f"s_and_b32 {sr(sT0)}, {sr(sIss)}, 5")
    e(f"s_cmp_lg_u32 {sr(sT0)}, 5")
    e("s_cbranch_scc1 L_GL")
    stamp(4)
    if opt.qpause:
        e("s_mov_b64 exec, 1")
        e(f"ds_add_u32 {vr(vSy)}, {vr(vOne)} offset:4")
        e("s_mov_b64 exec, -1")
    e(f"s_lshr_b32 {sr(sT0)}, {sr(sNew)}, 4")
    e(f"s_bcnt1_i32_b32 {sr(sT0)}, {sr(sT0)}")
    e(f"s_cmp_eq_u32 {sr(sT0)}, 2")
    e("s_cbranch_scc1 L_KW2")
    e(f"s_cmp_eq_u32 {sr(sT0)}, 1")
    e("s_cbranch_scc1 L_KW1")
    e("s_waitcnt vmcnt(0)")
    g.label("L_KW1")
    e("s_waitcnt vmcnt(3)")
    g.label("L_KW2")
    e("s_waitcnt vmcnt(6)")

    def gsum(j0, tmp, pkb, off):
        for r in range(3):
            for j in range(2):
                for d in range(4):
                    for hl in range(2):
                        a = tmp + 8 * r + 2 * d + hl
                        cin = "0" if j == 0 else vr(a)
                        e(f"v_dot2_f32_bf16 {vr(a)}, {vr(gd(j0+j,r)+d)}, {sr(sHI if hl else sLO)}, {cin}")
            if r >= 1:
                for d in range(4):
                    e(f"v_cvt_pk_bf16_f32 {vr(pkb+4*(r-1)+d)}, {vr(tmp+8*(r-1)+2*d)}, {vr(tmp+8*(r-1)+2*d+1)}")
                e(f"ds_write_b128 {vr(vGw)}, {vr(pkb+4*(r-1),4)} offset:{off+1024*(r-1)}")
        e("s_nop 1")
        for d in range(4):
            e(f"v_cvt_pk_bf16_f32 {vr(pkb+8+d)}, {vr(tmp+16+2*d)}, {vr(tmp+16+2*d+1)}")
        e(f"ds_write_b128 {vr(vGw)}, {vr(pkb+8,4)} offset:{off+2048}")

    gsum(0, vGt, vGp, 0)
    e("s_waitcnt lgkmcnt(0)")
    e("s_mov_b64 exec, 1")
    e(f"ds_add_u32 {vr(vSy)}, {vr(vOne)} offset:16")
    e("s_mov_b64 exec, -1")
    stamp(5)

    e(f"s_mov_b32 {sr(sCnt2)}, 0")
    g.label("L_W2")
    e(f"ds_read_b64 {vr(vX,2)}, {vr(vSy)} offset:8")
    e(f"ds_read_b32 {vr(vX-1)}, {vr(vSy)} offset:16")
    e(f"s_add_u32 {sr(sCnt2)}, {sr(sCnt2)}, 1")
    e("s_waitcnt lgkmcnt(0)")
    e(f"v_readfirstlane_b32 {sr(sT0)}, {vr(vX)}")
    e(f"v_readfirstlane_b32 {sr(sT2)}, {vr(vX+1)}")
    e(f"v_readfirstlane_b32 {sr(sT3)}, {vr(vX-1)}")
    e(f"s_lshr_b32 {sr(sT0)}, {sr(sT0)}, {sr(sCG)}")
    e(f"s_and_b32 {sr(sT0)}, {sr(sT0)}, 0x55")
    e(f"s_andn2_b32 {sr(sNew)}, {sr(sT0)}, {sr(sIss)}")
    e("s_cbranch_scc0 L_W2_NOV")
    issue_g([2, 3])
    g.label("L_W2_NOV")
    e(f"s_cmp_gt_u32 {sr(sCnt2)}, {SPIN*20}")
    e("s_cbranch_scc1 L_W2_DONE")
    if opt.vearly == 3:
        e(f"s_cmp_eq_u32 {sr(sIss)}, 0x55")
        e("s_cbranch_scc1 L_W2_VSUM")
    e(f"s_cmp_ge_u32 {sr(sT2)}, {sr(sNeed)}")
    e(f"s_cselect_b32 {sr(sT3)}, {sr(sT3)}, 0")
    e(f"s_cmp_eq_u32 {sr(sT3)}, 8")
    e("s_cbranch_scc1 L_W2_DONE")
    if opt.vearly:
        c("V partials complete while still waiting: sum them now")
        e(f"s_cmp_eq_u32 {sr(sIss)}, 0x55")
        e("s_cbranch_scc0 L_W2_SLEEP")
        if opt.vearly == 1:
            e(f"s_cmp_ge_u32 {sr(sT2)}, {sr(sNeed)}")
            e("s_cbranch_scc1 L_W2")
        g.label("L_W2_VSUM")
        e(f"s_mov_b32 {sr(sIss)}, 0xd5")
        e("s_waitcnt vmcnt(0)")
        gsum(2, vGt, vGp, 24576)
        e("s_waitcnt lgkmcnt(0)")
        e("s_mov_b64 exec, 1")
        e(f"ds_add_u32 {vr(vSy)}, {vr(vOne)} offset:20")
        e("s_mov_b64 exec, -1")
        e("s_branch L_W2")
        g.label("L_W2_SLEEP")
    e("s_sleep 1")
    e("s_branch L_W2")
    g.label("L_W2_DONE")
    stamp(6)
    stamp(7)

    vQf = 32
    NQ = 6
    vKP = 80
    vSa = 108
    vPf = 140
    NS = 7
    pend.clear()

    reads = []
    for s in range(12):
        reads.append(('q', s))
        reads.append(('kp', 2 * s))
        reads.append(('kp', 2 * s + 1))
    rp = [0]

    def do_read():
        tag = reads[rp[0]]
        rp[0] += 1
        if tag[0] == 'q':
            s = tag[1]
            e(f"ds_read_b128 {vr(vQf+4*(s%NQ),4)}, {vr(vQa+s)}")
        else:
            n = tag[1]
            e(f"ds_read_b128 {vr(vKP+4*(n%NS),4)}, {vr(vFr)} offset:{n*1024}")
        pend.append(tag)

    def can_issue(nd):
        if rp[0] >= len(reads):
            return False
        tag = reads[rp[0]]
        if tag[0] == 'q':
            return 2 * (tag[1] - NQ + 1) <= nd
        return tag[1] < nd + NS

    while can_issue(0):
        do_read()
    for n in range(24):
        s, rt = n // 2, n % 2
        wait_for([('q', s), ('kp', n)])
        a = vSa + 16 * rt
        cin = "0" if s == 0 else vr(a, 16)
        e(f"v_mfma_f32_32x32x16_bf16 {vr(a,16)}, {vr(vKP+4*(n%NS),4)}, {vr(vQf+4*(s%NQ),4)}, {cin}")
        while can_issue(n + 1):
            do_read()
    e(f"ds_read_b32 {vr(vX)}, {vr(vSy)} offset:8")
    e("s_nop 7")
    e("s_nop 1")
    c("softmax")
    vM, vM2, vSum, vSum2 = 156, 157, 158, 159
    e(f"v_max3_f32 {vr(vM)}, {vr(vSa)}, {vr(vSa+1)}, {vr(vSa+2)}")
    e(f"v_max3_f32 {vr(vM2)}, {vr(vSa+3)}, {vr(vSa+4)}, {vr(vSa+5)}")
    for i in range(6, 30, 4):
        e(f"v_max3_f32 {vr(vM)}, {vr(vM)}, {vr(vSa+i)}, {vr(vSa+i+1)}")
        e(f"v_max3_f32 {vr(vM2)}, {vr(vM2)}, {vr(vSa+i+2)}, {vr(vSa+i+3)}")
    e(f"v_max3_f32 {vr(vM)}, {vr(vM)}, {vr(vSa+30)}, {vr(vSa+31)}")
    e(f"v_max_f32 {vr(vM)}, {vr(vM)}, {vr(vM2)}")
    e(f"v_mov_b32 {vr(vM2)}, {vr(vM)}")
    c("late V loads")
    e("s_waitcnt lgkmcnt(0)")
    e(f"v_readfirstlane_b32 {sr(sT0)}, {vr(vX)}")
    e(f"v_permlane32_swap_b32 {vr(vM)}, {vr(vM2)}")
    e(f"s_lshr_b32 {sr(sT0)}, {sr(sT0)}, {sr(sCG)}")
    e(f"s_and_b32 {sr(sT0)}, {sr(sT0)}, 0x55")
    e(f"s_andn2_b32 {sr(sNew)}, {sr(sT0)}, {sr(sIss)}")
    e("s_cbranch_scc0 L_SM_NOV")
    issue_g([2, 3])
    g.label("L_SM_NOV")
    e(f"v_max_f32 {vr(vM)}, {vr(vM)}, {vr(vM2)}")
    e(f"v_mul_f32 {vr(vM)}, {sr(sC)}, {vr(vM)}")
    for i in range(32):
        e(f"v_fma_f32 {vr(vSa+i)}, {vr(vSa+i)}, {sr(sC)}, -{vr(vM)}")
    for i in range(32):
        e(f"v_exp_f32 {vr(vSa+i)}, {vr(vSa+i)}")
    e("s_nop 0")
    e(f"v_add_f32 {vr(vSum)}, {vr(vSa)}, {vr(vSa+1)}")
    e(f"v_add_f32 {vr(vSum2)}, {vr(vSa+2)}, {vr(vSa+3)}")
    for i in range(4, 32, 2):
        e(f"v_add_f32 {vr(vSum)}, {vr(vSum)}, {vr(vSa+i)}")
        e(f"v_add_f32 {vr(vSum2)}, {vr(vSum2)}, {vr(vSa+i+1)}")
    e(f"v_add_f32 {vr(vSum)}, {vr(vSum)}, {vr(vSum2)}")
    e(f"v_mov_b32 {vr(vSum2)}, {vr(vSum)}")
    e("s_nop 1")
    e(f"v_permlane32_swap_b32 {vr(vSum)}, {vr(vSum2)}")
    e("s_nop 1")
    e(f"v_add_f32 {vr(vSum)}, {vr(vSum)}, {vr(vSum2)}")
    e(f"v_rcp_f32 {vr(vSum)}, {vr(vSum)}")
    e("s_nop 0")
    for i in range(32):
        e(f"v_mul_f32 {vr(vSa+i)}, {vr(vSa+i)}, {vr(vSum)}")
    for i in range(16):
        e(f"v_cvt_pk_bf16_f32 {vr(vPf+i)}, {vr(vSa+2*i)}, {vr(vSa+2*i+1)}")
    stamp(8)
    c("V sum (unless already done)")
    e(f"s_mov_b32 {sr(sCnt2)}, 0")
    e(f"s_cmp_eq_u32 {sr(sIss)}, 0xd5")
    e("s_cbranch_scc1 L_W3")
    g.label("L_VL")
    e(f"s_cmp_eq_u32 {sr(sIss)}, 0x55")
    e("s_cbranch_scc1 L_VSUM")
    e(f"ds_read_b32 {vr(vX)}, {vr(vSy)} offset:8")
    e(f"s_add_u32 {sr(sCnt2)}, {sr(sCnt2)}, 1")
    e(f"s_cmp_gt_u32 {sr(sCnt2)}, {SPIN*20}")
    e(f"s_cselect_b32 {sr(sT1)}, 0xff, 0")
    e("s_waitcnt lgkmcnt(0)")
    e(f"v_readfirstlane_b32 {sr(sT0)}, {vr(vX)}")
    e(f"s_or_b32 {sr(sT0)}, {sr(sT0)}, {sr(sT1)}")
    e(f"s_lshr_b32 {sr(sT0)}, {sr(sT0)}, {sr(sCG)}")
    e(f"s_and_b32 {sr(sT0)}, {sr(sT0)}, 0x55")
    e(f"s_andn2_b32 {sr(sNew)}, {sr(sT0)}, {sr(sIss)}")
    issue_g([2, 3])
    e("s_branch L_VL")
    g.label("L_VSUM")
    e("s_waitcnt vmcnt(0)")
    gsum(2, vGt, 108, 24576)
    e("s_waitcnt lgkmcnt(0)")
    e("s_mov_b64 exec, 1")
    e(f"ds_add_u32 {vr(vSy)}, {vr(vOne)} offset:20")
    e("s_mov_b64 exec, -1")
    e(f"s_mov_b32 {sr(sCnt2)}, 0")
    g.label("L_W3")
    e(f"ds_read_b32 {vr(vX)}, {vr(vSy)} offset:20")
    e(f"s_add_u32 {sr(sCnt2)}, {sr(sCnt2)}, 1")
    e("s_waitcnt lgkmcnt(0)")
    e(f"v_readfirstlane_b32 {sr(sT0)}, {vr(vX)}")
    e(f"s_cmp_eq_u32 {sr(sT0)}, 8")
    e("s_cbranch_scc1 L_W3_DONE")
    e(f"s_cmp_gt_u32 {sr(sCnt2)}, {SPIN*20}")
    e("s_cbranch_scc0 L_W3")
    g.label("L_W3_DONE")
    stamp(9)

    vVP = 32
    vOa = 60
    vOa2 = 92
    vOpS = [124, 16]
    seq = [(jp, s, jj) for jp in range(3) for s in range(4) for jj in range(2)]
    VPB = 24576
    pend.clear()

    def vp_read(n):
        jp, s, jj = seq[n]
        e(f"ds_read_b128 {vr(vVP+4*(n%NS),4)}, {vr(vFr)} offset:{VPB+((2*jp+jj)*4+s)*1024}")
        pend.append(('vp', n))
    stp = opt.stpol
    for n in range(NS):
        vp_read(n)
    issued = NS

    def epilogue(jp):
        ob = vOa if jp % 2 == 0 else vOa2
        vOp = vOpS[jp % 2]
        for jj in range(2):
            a = ob + 16 * jj
            for a2 in range(2):
                pk = vOp + (jj * 2 + a2) * 4
                for d in range(4):
                    e(f"v_cvt_pk_bf16_f32 {vr(pk+d)}, {vr(a+8*a2+2*d)}, {vr(a+8*a2+2*d+1)}")
                e(f"ds_write_b128 {vr(vOw+2*jj+a2)}, {vr(pk,4)} offset:{128*jp}")
                pend.append(('w', jp, jj, a2))
        for i in range(4):
            e(f"ds_read_b128 {vr(vOp+4*i,4)}, {vr(vOr)} offset:{128*jp+3072*i}")
            pend.append(('r', jp, i))

    def stores(jp):
        vOp = vOpS[jp % 2]
        for i in range(4):
            wait_for([('r', jp, i)])
            e(f"buffer_store_dwordx4 {vr(vOp+4*i,4)}, {vr(vOg)}, {sr(S_O,4)}, {sr(sI+i)} offen offset:{128*jp} {stp}")

    for n in range(24):
        jp, s, jj = seq[n]
        wait_for([('vp', n)])
        ob = vOa if jp % 2 == 0 else vOa2
        a = ob + 16 * jj
        cin = "0" if s == 0 else vr(a, 16)
        e(f"v_mfma_f32_32x32x16_bf16 {vr(a,16)}, {vr(vVP+4*(n%NS),4)}, {vr(vPf+4*s,4)}, {cin}")
        if issued < 24:
            vp_read(issued)
            issued += 1
        if n % 8 == 1 and jp >= 1:
            e("s_nop 7")
            e("s_nop 1")
            epilogue(jp - 1)
        if n % 8 == 4 and jp >= 1:
            stores(jp - 1)
    e("s_nop 7")
    e("s_nop 3")
    epilogue(2)
    stores(2)
    stamp(10)
    if TS:
        e("s_waitcnt vmcnt(0)")
        stamp(11)
        e("s_branch L_TS")
    else:
        e("s_endpgm")

    g.label("L_HELP")
    for i in range(4, 10):
        stamp2(i)
    e(f"v_mov_b32 {vr(vSy)}, {SYNC}")
    e(f"v_mov_b32 {vr(vOne)}, 1")
    e(f"s_mov_b32 {sr(sCnt)}, 0")
    e(f"s_cmp_eq_u32 {sr(sW)}, 8")
    e("s_cbranch_scc0 L_POLLER")
    c("---- Q loader")
    vQd = 32
    e(f"v_lshlrev_b32 {vr(vT+2)}, 2, {vr(vLane)}")
    e(f"v_add_u32 {vr(vT+2)}, {SYNC}, {vr(vT+2)}")
    e(f"v_mov_b32 {vr(vT+3)}, 0")
    e(f"ds_write_b32 {vr(vT+2)}, {vr(vT+3)}")
    e(f"v_lshrrev_b32 {vr(vT)}, 3, {vr(vLane)}")
    e(f"v_and_b32 {vr(vT+4)}, 7, {vr(vLane)}")
    e(f"v_lshrrev_b32 {vr(vT+2)}, 4, {vr(vLane)}")
    e(f"v_xor_b32 {vr(vT+3)}, {vr(vT+2)}, {vr(vT+4)}")
    e(f"v_lshlrev_b32 {vr(vT+3)}, 4, {vr(vT+3)}")
    e(f"v_lshl_add_u32 {vr(vQd)}, {vr(vT)}, 7, {vr(vT+3)}")
    e(f"v_xor_b32 {vr(vQd+1)}, 64, {vr(vQd)}")
    e(f"s_mul_i32 {sr(sT1)}, {sr(sSub)}, 98304")
    e(f"s_add_u32 {sr(sT1)}, {sr(sT1)}, {sr(sT0)}")
    e(f"s_mov_b32 {sr(S_Q+2)}, 98304")
    e(f"s_mov_b32 {sr(S_Q+3)}, 0x00020000")
    e("s_waitcnt lgkmcnt(0)")
    e(f"s_add_u32 {sr(S_Q)}, s4, {sr(sT1)}")
    e(f"s_addc_u32 {sr(S_Q+1)}, s5, 0")
    for i in range(NPB):
        e("s_barrier")

    def q_instr(i):
        if i % 4 == 0:
            e(f"s_mov_b32 {sr(sT3)}, {1024*i}")
            e(f"s_mov_b32 m0, {sr(sT3)}")
            e("s_nop 0")
        e(f"buffer_load_dwordx4 {vr(vQd+(i&1))}, {sr(S_Q,4)}, {sr(sT3)} offen offset:{1024*(i&3)} {opt.qpol} lds")

    qs = [int(x) for x in opt.qsched.split(",")]
    nq = 0
    for t in range(8):
        e("s_barrier")
        if t == 0:
            stamp(1)
        if t >= 5:
            lim = min(nq + qs[t - 5], 24 * (t - 4))
            while nq < lim:
                q_instr(nq)
                nq += 1
    stamp(2)
    e("s_barrier")
    stamp(3)
    stamp(6)
    stamp(7)
    e("s_waitcnt lgkmcnt(0)")
    QD = min(opt.qdepth, 63)
    posted = [0]
    tail = [0]

    def post(kb):
        kb = kb // 12 * 12
        if kb > posted[0]:
            e(f"v_mov_b32 {vr(vX)}, {kb}")
            e(f"{'ds_max_u32' if tail[0] else 'ds_write_b32'} {vr(vSy)}, {vr(vX)} offset:12")
            posted[0] = kb
    QG = opt.qgran
    landed = 0
    i = nq
    if opt.qpause:
        assert nq % 4 == 0 and QD % 4 == 0
        sQi = 12

        def q4():
            e(f"s_mov_b32 m0, {sr(sQi)}")
            e("s_nop 0")
            for k in range(4):
                e(f"buffer_load_dwordx4 {vr(vQd+(k&1))}, {sr(S_Q,4)}, {sr(sQi)} offen offset:{1024*k} {opt.qpol} lds")
            e(f"s_add_u32 {sr(sQi)}, {sr(sQi)}, 4096")
        e(f"s_mov_b32 {sr(sQi)}, {1024*nq}")
        g.label("L_QA")
        e(f"ds_read_b32 {vr(vX)}, {vr(vSy)} offset:8")
        e(f"s_lshr_b32 {sr(sT1)}, {sr(sQi)}, 10")
        e(f"s_sub_u32 {sr(sT1)}, {sr(sT1)}, {QD-4}")
        e(f"s_max_i32 {sr(sT1)}, {sr(sT1)}, 0")
        e(f"v_mov_b32 {vr(vX+1)}, {sr(sT1)}")
        e(f"s_waitcnt vmcnt({QD-4}) lgkmcnt(0)")
        e(f"ds_write_b32 {vr(vSy)}, {vr(vX+1)} offset:12")
        e(f"v_readfirstlane_b32 {sr(sT0)}, {vr(vX)}")
        e(f"s_and_b32 {sr(sT0)}, {sr(sT0)}, {opt.qpm}")
        e(f"s_bcnt1_i32_b32 {sr(sT0)}, {sr(sT0)}")
        e(f"s_cmp_ge_u32 {sr(sT0)}, {opt.qpause}")
        e("s_cbranch_scc1 L_QB")
        q4()
        e(f"s_cmp_lt_u32 {sr(sQi)}, 98304")
        e("s_cbranch_scc1 L_QA")
        e("s_branch L_QT")
        g.label("L_QB")
        stamp(6)
        g.label("L_QB2")
        e(f"ds_read_b32 {vr(vX)}, {vr(vSy)} offset:4")
        e(f"s_add_u32 {sr(sCnt)}, {sr(sCnt)}, 1")
        e("s_waitcnt lgkmcnt(0)")
        e(f"v_readfirstlane_b32 {sr(sT0)}, {vr(vX)}")
        e(f"s_cmp_ge_u32 {sr(sT0)}, {opt.qres}")
        e("s_cbranch_scc1 L_QC0")
        e(f"s_cmp_gt_u32 {sr(sCnt)}, {SPIN*20}")
        e("s_cbranch_scc0 L_QB2")
        g.label("L_QC0")
        stamp(7)
        if TS:
            e(f"s_lshr_b32 {sr(sCnt)}, {sr(sQi)}, 10")
        g.label("L_QC")
        if opt.qd2 < 63:
            e(f"s_lshr_b32 {sr(sT1)}, {sr(sQi)}, 10")
            e(f"s_sub_u32 {sr(sT1)}, {sr(sT1)}, {opt.qd2-4}")
            e(f"s_max_i32 {sr(sT1)}, {sr(sT1)}, 0")
            e(f"v_max_u32 {vr(vX+1)}, {sr(sT1)}, {vr(vX+1)}")
            e(f"s_waitcnt vmcnt({opt.qd2-4})")
            e(f"ds_write_b32 {vr(vSy)}, {vr(vX+1)} offset:12")
        q4()
        e(f"s_cmp_lt_u32 {sr(sQi)}, 98304")
        e("s_cbranch_scc1 L_QC")
        g.label("L_QT")
        i = 96
    while i < 96:
        n = min(QG, 96 - i)
        need = i + n - QD
        if need > landed:
            for kb in range(12, 97, 12):
                if landed < kb < need:
                    e(f"s_waitcnt vmcnt({min(63, i-kb)})")
                    post(kb)
            e(f"s_waitcnt vmcnt({min(63, i-need)})")
            landed = need
            post(landed)
        for k in range(n):
            q_instr(i + k)
        i += n
    stamp(4)
    tail[0] = 1
    e("s_mov_b64 exec, 1")
    for kb in range(36 if opt.qpause else 12, 97, 12):
        if kb > posted[0]:
            e(f"s_waitcnt vmcnt({min(63, 96-kb)})")
            post(kb)
    stamp(5)
    if TS:
        for i in range(8 if opt.qpause else 6, 12):
            stamp(i)
        e("s_branch L_TS")
    else:
        e("s_waitcnt lgkmcnt(0)")
        e("s_endpgm")

    c("---- poller")
    g.label("L_POLLER")
    vFl, vDb, vRd = 32, 33, 34
    e(f"v_lshlrev_b32 {vr(vFl)}, 2, {vr(vLane)}")
    e(f"v_mov_b32 {vr(vT+3)}, 0")
    e(f"s_lshl_b32 {sr(sT1)}, {sr(sH)}, 2")
    e(f"s_add_u32 {sr(sT1)}, {sr(sT1)}, 128")
    e(f"v_mov_b32 {vr(vDb)}, {sr(sT1)}")
    e(f"s_mov_b32 {sr(S_D+2)}, 256")
    e(f"s_mov_b32 {sr(S_D+3)}, 0x00020000")
    e("s_waitcnt lgkmcnt(0)")
    flag_srd()
    e(f"s_mov_b32 {sr(S_D)}, s16")
    e(f"s_mov_b32 {sr(S_D+1)}, s17")
    if opt.warm & 2:
        c("pull this workgroup's share of the code into L2")
        e(f"s_getpc_b64 {sr(S_KV,2)}")
        g.label("L_PC")
        e(f"s_mul_i32 {sr(sT1)}, {sr(sSub)}, ((L_END-{NAME}_kernel+4+511)/512)*64")
        e(f"s_sub_u32 {sr(S_KV)}, {sr(S_KV)}, L_PC-{NAME}_kernel")
        e(f"s_subb_u32 {sr(S_KV+1)}, {sr(S_KV+1)}, 0")
        e(f"s_mov_b32 {sr(S_KV+2)}, L_END-{NAME}_kernel+4")
        e(f"s_mov_b32 {sr(S_KV+3)}, 0x00020000")
        e(f"v_lshl_add_u32 {vr(40)}, {vr(vLane)}, 6, {sr(sT1)}")
        e(f"buffer_load_dword {vr(41)}, {vr(40)}, {sr(S_KV,4)}, 0 offen")
    if opt.warm & 1:
        c("touch the pages used later (address translation warm-up)")
        e(f"s_mul_i32 {sr(sT1)}, {sr(sSub)}, 98304")
        e(f"s_add_u32 {sr(sT1)}, {sr(sT1)}, {sr(sT0)}")
        e(f"s_add_u32 {sr(S_O)}, s14, {sr(sT1)}")
        e(f"s_addc_u32 {sr(S_O+1)}, s15, 0")
        e(f"s_mov_b32 {sr(S_O+2)}, 98304")
        e(f"s_mov_b32 {sr(S_O+3)}, 0x00020000")
        e(f"s_add_u32 {sr(S_Q)}, s4, {sr(sT1)}")
        e(f"s_addc_u32 {sr(S_Q+1)}, s5, 0")
        e(f"s_mov_b32 {sr(S_Q+2)}, 98304")
        e(f"s_mov_b32 {sr(S_Q+3)}, 0x00020000")
        e(f"s_mul_i32 {sr(sT1)}, {sr(sH)}, 98304")
        e(f"s_add_u32 {sr(S_P)}, s18, {sr(sT1)}")
        e(f"s_addc_u32 {sr(S_P+1)}, s19, 0")
        e(f"s_mov_b32 {sr(S_P+2)}, 98304")
        e(f"s_mov_b32 {sr(S_P+3)}, 0x00020000")
        e(f"v_lshlrev_b32 {vr(42)}, {opt.wsh}, {vr(vLane)}")

    def tlbwarm():
        e("s_mov_b64 exec, -1")
        e(f"buffer_load_dword {vr(43)}, {vr(42)}, {sr(S_P,4)}, 0 offen sc1")
        e(f"buffer_load_dword {vr(44)}, {vr(42)}, {sr(S_O,4)}, 0 offen sc1")
        e(f"buffer_load_dword {vr(45)}, {vr(42)}, {sr(S_Q,4)}, 0 offen nt")
        e(f"buffer_load_dword {vr(46)}, {vr(vFl)}, {sr(S_F,4)}, 0 offen sc1")
        e(f"s_load_dword s3, {sr(S_F,2)}, 2048")
    if (opt.warm & 1) and opt.wt < 0:
        tlbwarm()
    if opt.warm & 4:
        c("pull a share of E / F into L2")
        e(f"s_lshr_b32 {sr(sT1)}, {sr(sH)}, 3")
        e(f"s_and_b32 {sr(sT2)}, {sr(sSub)}, 3")
        e(f"s_lshl2_add_u32 {sr(sT1)}, {sr(sT2)}, {sr(sT1)}")
        e(f"s_lshl_b32 {sr(sT1)}, {sr(sT1)}, 14")
        e(f"s_cmp_lt_u32 {sr(sSub)}, 4")
        e(f"s_cselect_b32 {sr(S_E)}, s10, s12")
        e(f"s_cselect_b32 {sr(S_E+1)}, s11, s13")
        e(f"s_mov_b32 {sr(S_E+2)}, 262144")
        e(f"s_mov_b32 {sr(S_E+3)}, 0x00020000")
        e(f"v_lshl_add_u32 {vr(47)}, {vr(vLane)}, 6, {sr(sT1)}")

    def ewarm():
        m = ((1 << 32) - 1) & ~((1 << (4 * opt.ew0)) - 1)
        e(f"s_mov_b32 exec_lo, 0x{m:x}")
        e(f"s_mov_b32 exec_hi, 0x{m:x}")
        for i in range(4):
            if i:
                e(f"s_movk_i32 {sr(sT2)}, {4096*i}")
            e(f"buffer_load_dword {vr(48+i)}, {vr(47)}, {sr(S_E,4)}, {sr(sT2) if i else 0} offen")
        e("s_mov_b64 exec, -1")
    if (opt.warm & 4) and opt.ewt < 0:
        ewarm()
    e(f"s_cmp_lg_u32 {sr(sSub)}, 0")
    e("s_cbranch_scc1 L_NOCLR")
    e(f"buffer_store_dword {vr(vT+3)}, {vr(vFl)}, {sr(S_F,4)}, 0 offen sc1")
    g.label("L_NOCLR")
    for i in range(NPB):
        e("s_barrier")
        if (opt.warm & 4) and opt.ewt == i:
            ewarm()
    e("s_mov_b64 exec, 1")

    def signal():
        e(f"s_cmp_lg_u32 {sr(sSub)}, 0")
        e("s_cbranch_scc1 L_NOSIG")
        e("s_waitcnt vmcnt(0)")
        e(f"buffer_store_dword {vr(vOne)}, {vr(vDb)}, {sr(S_D,4)}, 0 offen sc1")
        g.label("L_NOSIG")
    if opt.sigt < 0:
        signal()
    for t in range(8):
        e("s_barrier")
        if t == 0:
            stamp(1)
        if t == opt.sigt:
            signal()
        if (opt.warm & 1) and opt.wt == t:
            tlbwarm()
            e("s_mov_b64 exec, 1")
        if t == 4:
            e(f"buffer_load_dword {vr(vRd)}, {vr(vDb)}, {sr(S_D,4)}, 0 offen sc1")
    g.label("L_CHK")
    e("s_waitcnt vmcnt(0)")
    e(f"v_readfirstlane_b32 {sr(sT0)}, {vr(vRd)}")
    e(f"s_cmp_eq_u32 {sr(sT0)}, 1")
    e("s_cbranch_scc1 L_CHK_DONE")
    e(f"s_add_u32 {sr(sCnt)}, {sr(sCnt)}, 1")
    e(f"s_cmp_gt_u32 {sr(sCnt)}, {SPIN}")
    e("s_cbranch_scc1 L_CHK_DONE")
    e("s_sleep 4")
    e(f"buffer_load_dword {vr(vRd)}, {vr(vDb)}, {sr(S_D,4)}, 0 offen sc1")
    e("s_branch L_CHK")
    g.label("L_CHK_DONE")
    stamp(2)
    if opt.eflag:
        e(f"s_lshl_b32 {sr(sT1)}, {sr(sSub)}, 2")
        e(f"v_mov_b32 {vr(vFo)}, {sr(sT1)}")
    e("s_barrier")
    if opt.eflag:
        e(f"buffer_store_dword {vr(vOne)}, {vr(vFo)}, {sr(S_F,4)}, 0 offen {opt.fpol}")
    stamp(3)
    e(f"s_mov_b32 {sr(sCnt)}, 0")
    e(f"s_mov_b32 {sr(sMask)}, 0")
    e(f"s_mov_b64 exec, {-1 if WF else 0xff}")
    if opt.pdelay:
        c("first poll once this workgroup's own stores have drained")
        g.label("L_PD")
        e(f"ds_read_b32 {vr(vX)}, {vr(vSy)}")
        e(f"s_add_u32 {sr(sCnt)}, {sr(sCnt)}, 1")
        e("s_waitcnt lgkmcnt(0)")
        e(f"v_readfirstlane_b32 {sr(sT0)}, {vr(vX)}")
        e(f"s_cmp_ge_u32 {sr(sT0)}, {opt.pdelay}")
        e("s_cbranch_scc1 L_PD_DONE")
        e(f"s_cmp_gt_u32 {sr(sCnt)}, {SPIN*20}")
        e("s_cbranch_scc0 L_PD")
        g.label("L_PD_DONE")
        e(f"s_mov_b32 {sr(sCnt)}, 0")
    g.label("L_POLL")
    if opt.spoll:
        e(f"s_load_dwordx8 s[20:27], {sr(S_F,2)}, 0 glc")
    else:
        e(f"buffer_load_dword {vr(vRd)}, {vr(vFl)}, {sr(S_F,4)}, 0 offen sc1")
    e(f"s_add_u32 {sr(sCnt)}, {sr(sCnt)}, 1")
    e(f"s_cmp_gt_u32 {sr(sCnt)}, {SPIN}")
    e(f"s_cselect_b32 {sr(sT1)}, 0xff, {sr(sMask) if opt.spoll else 0}")
    if opt.spoll:
        c("device-scope vector poll as well once the fast polls have not finished the job")
        e(f"s_cmp_lt_u32 {sr(sCnt)}, {opt.vfall}")
        e("s_cbranch_scc1 L_POLL_S")
        e(f"buffer_load_dword {vr(vRd)}, {vr(vFl)}, {sr(S_F,4)}, 0 offen sc1")
        e("s_waitcnt vmcnt(0)")
        e(f"v_cmp_eq_u32 vcc, 1, {vr(vRd)}")
        e("s_nop 1")
        e(f"s_or_b32 {sr(sT1)}, {sr(sT1)}, vcc_lo")
        g.label("L_POLL_S")
        e("s_waitcnt lgkmcnt(0)")
        for j in range(8):
            e(f"s_cmp_eq_u32 s{20+j}, 1")
            e(f"s_cselect_b32 s{20+j}, {1<<j}, 0")
            e(f"s_or_b32 {sr(sT1)}, {sr(sT1)}, s{20+j}")
        e(f"s_mov_b32 {sr(sT0)}, {sr(sT1)}")
    else:
        e("s_waitcnt vmcnt(0)")
        e(f"v_cmp_eq_u32 vcc, 1, {vr(vRd)}")
    if opt.spoll:
        pass
    elif WF:
        c("byte-wise AND reduction of the 64 wave flags")
        e(f"s_lshr_b64 {sr(sT2+1,2) if False else 's[12:13]'}, vcc, 4")
        e("s_and_b64 s[12:13], s[12:13], vcc")
        e("s_lshr_b64 s[14:15], s[12:13], 2")
        e("s_and_b64 s[12:13], s[12:13], s[14:15]")
        e("s_lshr_b64 s[14:15], s[12:13], 1")
        e("s_and_b64 s[12:13], s[12:13], s[14:15]")
        for r_ in (12, 13):
            e(f"s_and_b32 s{r_}, s{r_}, 0x01010101")
            e(f"s_mul_i32 s{r_}, s{r_}, 0x01020408")
            e(f"s_bfe_u32 s{r_}, s{r_}, 0x40018")
        e("s_lshl4_add_u32 s12, s13, s12")
        e(f"s_or_b32 {sr(sT0)}, {sr(sT1)}, s12")
    else:
        e("s_nop 1")
        e(f"s_or_b32 {sr(sT0)}, {sr(sT1)}, vcc_lo")
    e(f"s_cmp_eq_u32 {sr(sT0)}, {sr(sMask)}")
    e("s_cbranch_scc1 L_POLL_SAME")
    e(f"v_mov_b32 {vr(vX)}, {sr(sT0)}")
    e(f"ds_write_b32 {vr(vSy)}, {vr(vX)} offset:8")
    if TS:
        e(f"s_cmp_lg_u32 {sr(sMask)}, 0")
        e("s_cbranch_scc1 L_POLL_NOTS")
        stamp(4)
        g.label("L_POLL_NOTS")
    e(f"s_mov_b32 {sr(sMask)}, {sr(sT0)}")
    e(f"s_cmp_eq_u32 {sr(sMask)}, 0xff")
    e("s_cbranch_scc1 L_POLL_DONE")
    g.label("L_POLL_SAME")
    if opt.psleep:
        e(f"s_sleep {opt.psleep}")
    e("s_branch L_POLL")
    g.label("L_POLL_DONE")
    if TS:
        for i in range(5, 12):
            stamp(i)
        g.label("L_TS")
        e("s_waitcnt lgkmcnt(0)")
        if opt.diag:
            di, dw, dwg = [int(x) for x in opt.diag.split(",")]
            e(f"s_cmp_lg_u32 {sr(sW)}, {dw}")
            e("s_cbranch_scc1 L_END")
            if dwg >= 0:
                e(f"s_cmp_lg_u32 s2, {dwg}")
                e("s_cbranch_scc1 L_END")
            e(f"s_add_u32 s3, {sr(sTS+2*di)}, 4000")
            g.label("L_DIAG")
            e("s_sleep 1")
            e("s_memrealtime s[12:13]")
            e("s_waitcnt lgkmcnt(0)")
            e("s_sub_u32 s12, s12, s3")
            e("s_cmp_lt_i32 s12, 0")
            e("s_cbranch_scc1 L_DIAG")
            e("s_branch L_END")
        c("records: waves 0, 7, 8, 9")
        e(f"s_sub_u32 s3, {sr(sW)}, 6")
        e(f"s_cmp_eq_u32 {sr(sW)}, 0")
        e("s_cselect_b32 s3, 0, s3")
        e("s_cselect_b32 s12, 7, s44")
        e("s_cmp_lt_u32 s12, 7")
        e("s_cbranch_scc1 L_END")
        e(f"s_add_u32 {sr(S_P)}, s18, 0x1000000")
        e(f"s_addc_u32 {sr(S_P+1)}, s19, 0")
        e(f"s_mov_b32 {sr(S_P+2)}, 0x20000")
        e(f"s_mov_b32 {sr(S_P+3)}, 0x00020000")
        e("s_mov_b64 exec, 1")
        e(f"s_lshl_b32 {sr(sT0)}, s3, 7")
        e("s_lshl_b32 s3, s2, 9")
        e(f"s_add_u32 s3, s3, {sr(sT0)}")
        e(f"v_mov_b32 {vr(vT)}, s3")
        e(f"s_mov_b32 {sr(sTS+24)}, 0")
        e(f"s_mov_b32 {sr(sTS+25)}, {sr(sCnt)}")
        for i in range(13):
            e(f"v_mov_b32 {vr(vT+2)}, {sr(sTS+2*i)}")
            e(f"v_mov_b32 {vr(vT+3)}, {sr(sTS+2*i+1)}")
            e(f"buffer_store_dwordx2 {vr(vT+2,2)}, {vr(vT)}, {sr(S_P,4)}, 0 offen offset:{8*i}")
            e("s_nop 1")
    else:
        e("s_waitcnt lgkmcnt(0)")
    g.label("L_END")
    e("s_endpgm")

    return HEADER.format(n=NAME) + "\n".join(g.lines) + FOOTER.format(n=NAME, vgpr=160, acc=160)


if __name__ == "__main__":
    ap = argparse.ArgumentParser()
    ap.add_argument("-o", default=f"cdna_kernels/{NAME}.s")
    ap.add_argument("--ts", type=int, default=0)
    ap.add_argument("--qsched", default="24,0,0")
    ap.add_argument("--qdepth", type=int, default=24)
    ap.add_argument("--qgran", type=int, default=1)
    ap.add_argument("--pbar", type=int, default=1)
    ap.add_argument("--psleep", type=int, default=1)
    ap.add_argument("--pdelay", type=int, default=0)
    ap.add_argument("--wflag", type=int, default=0)
    ap.add_argument("--vearly", type=int, default=1)
    ap.add_argument("--kpol", default="nt")
    ap.add_argument("--qpause", type=int, default=0)
    ap.add_argument("--qpm", type=lambda x: int(x, 0), default=0xff)
    ap.add_argument("--qres", type=int, default=8)
    ap.add_argument("--qd2", type=int, default=63)
    ap.add_argument("--ppol", default="sc1")
    ap.add_argument("--fpol", default="sc1")
    ap.add_argument("--spoll", type=int, default=0)
    ap.add_argument("--stpol", default="sc1")
    ap.add_argument("--warm", type=int, default=0)
    ap.add_argument("--wsh", type=int, default=12)
    ap.add_argument("--diag", default="")
    ap.add_argument("--sigt", type=int, default=-1)
    ap.add_argument("--smid", type=int, default=4)
    ap.add_argument("--k3late", type=int, default=0)
    ap.add_argument("--ewt", type=int, default=-1)
    ap.add_argument("--ew0", type=int, default=0)
    ap.add_argument("--wt", type=int, default=-1)
    ap.add_argument("--gpol", default="sc1")
    ap.add_argument("--rot", type=int, default=0)
    ap.add_argument("--xe", type=int, default=1)
    ap.add_argument("--xg", type=int, default=0)
    ap.add_argument("--eflag", type=int, default=0)
    ap.add_argument("--qpol", default="nt")
    ap.add_argument("--vfall", type=int, default=12)
    opt = ap.parse_args()
    open(opt.o, "w").write(gen(opt))
```
